```python
import torch

def _softmax(x, axis=-1):
    return torch.softmax(x, dim=axis)

def _gelu(x):
    return torch.nn.functional.gelu(x, approximate='tanh')

def _silu(x):
    return torch.nn.functional.silu(x)

def _sigmoid(x):
    return torch.sigmoid(x)

def _layernorm(x, axis=-1, eps=1e-05):
    m = x.mean(dim=axis, keepdim=True)
    v = x.var(dim=axis, keepdim=True, unbiased=False)
    return (x - m) / torch.sqrt(v + eps)

def _scatter_add(tgt, idx, src, axis=0):
    return tgt.clone().index_add_(axis, idx, src)

def _segment_sum(src, seg, n):
    out = torch.zeros((n,) + src.shape[1:], dtype=src.dtype)
    return out.index_add_(0, seg, src)

def _pad(x, pw):
    flat = tuple((v for pair in reversed(pw) for v in pair))
    return torch.nn.functional.pad(x, flat)
kernel_name = 'parallel_sum__memory_aug_recurrent_mem_tr__dense_activation_silu__prompt'

def setup_inputs():

    _w = lambda a: (lambda t: t.to(torch.bfloat16) if t.is_floating_point() else t)(torch.as_tensor(a))

    def _A_setup():
        B, S, Dm = (1, 2048, 448)
        H, Dh = (16, 256)
        M, seg = (8, 32)
        seg = min(seg, S)
        S = S // seg * seg
        return {'x': _w((lambda *s: torch.randn(*s, dtype=torch.bfloat16) * 0.05)(B, S, Dm)), 'mem0': _w((lambda *s: torch.randn(*s, dtype=torch.bfloat16) * 0.2)(B, M, Dm)), 'Wq': _w((lambda *s: torch.randn(*s, dtype=torch.bfloat16) * 1.6)(Dm, H, Dh) * Dm ** (-0.5)), 'Wk': _w((lambda *s: torch.randn(*s, dtype=torch.bfloat16) * 1.6)(Dm, H, Dh) * Dm ** (-0.5)), 'Wv': _w((lambda *s: torch.randn(*s, dtype=torch.bfloat16) * 0.2)(Dm, H, Dh) * Dm ** (-0.5)), 'Wo': _w((lambda *s: torch.randn(*s, dtype=torch.bfloat16) * 0.2)(H, Dh, Dm) * (H * Dh) ** (-0.5)), 'seg_len': seg}
    _A_in = _A_setup()

    def _B_setup():
        B, S, D, F = (1, 2048, 448, 1792)
        return {'x': _w((lambda *s: torch.randn(*s, dtype=torch.bfloat16) * 0.05)(B, S, D)), 'w1': _w((lambda *s: torch.randn(*s, dtype=torch.bfloat16) * 0.8)(D, F) * D ** (-0.5)), 'w2': _w((lambda *s: torch.randn(*s, dtype=torch.bfloat16) * 0.1)(F, D) * F ** (-0.5))}
    _B_in = _B_setup()
    return {'A_x': _A_in['x'], 'A_mem0': _A_in['mem0'], 'A_Wq': _A_in['Wq'], 'A_Wk': _A_in['Wk'], 'A_Wv': _A_in['Wv'], 'A_Wo': _A_in['Wo'], 'A_seg_len': _A_in['seg_len'], 'B_x': _B_in['x'], 'B_w1': _B_in['w1'], 'B_w2': _B_in['w2']}

def reference(A_x, A_mem0, A_Wq, A_Wk, A_Wv, A_Wo, A_seg_len, B_x, B_w1, B_w2):

    def _A_ref(x, mem0, Wq, Wk, Wv, Wo, seg_len):
        B, S, Dm = x.shape
        H, Dh = (Wq.shape[1], Wq.shape[2])
        M = mem0.shape[1]
        scale = Dh ** (-0.5)
        n_seg = S // seg_len
        L = M + seg_len
        idx = torch.arange(L)
        mask = (idx[:, None] < M) | (idx[:, None] >= idx[None, :])
        mem = mem0
        outs = []
        for s in range(n_seg):
            xs = x[:, s * seg_len:(s + 1) * seg_len, :].clone()
            h = torch.concatenate([mem, xs], axis=1)
            q = torch.einsum('btd,dhe->bhte', h, Wq)
            k = torch.einsum('btd,dhe->bhte', h, Wk)
            v = torch.einsum('btd,dhe->bhte', h, Wv)
            scores = torch.einsum('bhqe,bhke->bhqk', q, k) * scale
            scores = torch.where(mask[None, None], scores, -1000000000.0)
            p = _softmax(scores, axis=-1)
            o = torch.einsum('bhqk,bhke->bhqe', p, v)
            o = torch.einsum('bhte,hed->btd', o, Wo)
            mem = o[:, :M, :].clone()
            outs.append(o[:, M:, :])
        return torch.concatenate(outs, axis=1)

    def _B_ref(x, w1, w2):
        h = torch.einsum('bsd,df->bsf', x, w1)
        h = _silu(h)
        out = torch.einsum('bsf,fd->bsd', h, w2)
        return out
    x = A_x
    xn = _layernorm(x, axis=-1)
    return x + _A_ref(xn, A_mem0, A_Wq, A_Wk, A_Wv, A_Wo, A_seg_len) + _B_ref(xn, B_w1, B_w2)
```

```python
import re

class Asm:
    def __init__(self):
        self.lines = []
        self.uid = 0
    def __call__(self, s):
        for l in s.split('\n'):
            l = l.strip()
            if l:
                self.lines.append(l)
    def label(self, name):
        self.lines.append(name + ':')
    def newlabel(self, base):
        self.uid += 1
        return 'L_%s_%d' % (base, self.uid)
    def text(self):
        out = []
        for l in self.lines:
            if l.endswith(':') or l.startswith('.') or l.startswith(';'):
                out.append(l)
            else:
                out.append('    ' + l)
        return '\n'.join(out) + '\n'

def vr(a, n=1):
    return 'v%d' % a if n == 1 else 'v[%d:%d]' % (a, a + n - 1)
def ar(a, n=1):
    return 'a%d' % a if n == 1 else 'a[%d:%d]' % (a, a + n - 1)
def sr(a, n=1):
    return 's%d' % a if n == 1 else 's[%d:%d]' % (a, a + n - 1)
def R(x, n=1):
    if x >= 256:
        assert x + n <= 512
        return ar(x - 256, n)
    assert x + n <= 256, (x, n)
    return vr(x, n)

_reg = re.compile(r'^(v|a|s)(\d+)$|^(v|a|s)\[(\d+):(\d+)\]$')
def regs_of(tok):
    tok = tok.strip()
    tok = tok.replace('abs(', '').replace(')', '').replace('|', '')
    if tok.startswith('-'):
        tok = tok[1:]
    if tok == 'vcc':
        return {('s', 106), ('s', 107)}
    if tok == 'm0':
        return {('s', 124)}
    if tok == 'exec':
        return {('s', 126), ('s', 127)}
    m = _reg.match(tok)
    if not m:
        return set()
    if m.group(1):
        return {(m.group(1), int(m.group(2)))}
    return {(m.group(3), i) for i in range(int(m.group(4)), int(m.group(5)) + 1)}

TRANS = ('v_exp_f32', 'v_log_f32', 'v_rcp_f32', 'v_rsq_f32', 'v_sqrt_f32')

def parse(l):
    l = l.split(';')[0].strip()
    sp = l.split(None, 1)
    op = sp[0]
    ops = []
    mods = ''
    if len(sp) > 1:
        parts = [p.strip() for p in sp[1].split(',')]
        j = []
        depth = 0
        for p in parts:
            if depth > 0:
                j[-1] += ',' + p
            else:
                j.append(p)
            depth += p.count('(') - p.count(')')
            if 'quad_perm:[' in p or (depth == 0 and False):
                pass
        ops = []
        for p in j:
            w = p.split()
            ops.append(w[0] if w else '')
            mods += ' ' + ' '.join(w[1:])
    return op, ops, mods + ' ' + (sp[1] if len(sp) > 1 else '')

def classify(l):
    op, ops, mods = parse(l)
    d = set(); s = set()
    kind = 'other'
    if op.startswith('v_mfma') or op.startswith('v_smfmac'):
        kind = 'mfma'
        d = regs_of(ops[0])
        ab = regs_of(ops[1]) | regs_of(ops[2])
        if op.startswith('v_smfmac'):
            ab |= regs_of(ops[3]); c = set(d)
        else:
            c = regs_of(ops[3])
        return dict(op=op, kind=kind, d=d, s=ab | c, ab=ab, c=c, mods=mods)
    if op.startswith('v_'):
        kind = 'valu'
        if op.startswith('v_permlane'):
            d = regs_of(ops[0]) | regs_of(ops[1]); s = set(d)
        elif op.startswith('v_cmp'):
            d = regs_of(ops[0])
            for o in ops[1:]: s |= regs_of(o)
        elif op.startswith('v_add_co') or op.startswith('v_addc_co'):
            d = regs_of(ops[0]) | regs_of(ops[1])
            for o in ops[2:]: s |= regs_of(o)
        else:
            d = regs_of(ops[0])
            for o in ops[1:]: s |= regs_of(o)
            if op.startswith('v_fmac') or 'dpp' in op or op.startswith('v_writelane'):
                s |= d if (op.startswith('v_fmac') or op.startswith('v_writelane')) else set()
    elif op.startswith('ds_read'):
        kind = 'ds'; d = regs_of(ops[0]); s = regs_of(ops[1])
    elif op.startswith('ds_'):
        kind = 'ds'
        for o in ops: s |= regs_of(o)
    elif op.startswith('buffer_load'):
        kind = 'vmem'
        if ' lds' in mods:
            for o in ops: s |= regs_of(o)
            s |= regs_of('m0')
        else:
            d = regs_of(ops[0])
            for o in ops[1:]: s |= regs_of(o)
    elif op.startswith('buffer_store') or op.startswith('buffer_atomic'):
        kind = 'vmem'
        for o in ops: s |= regs_of(o)
        if op.startswith('buffer_atomic') and 'sc0' in mods:
            d = regs_of(ops[0])
    elif op.startswith('s_'):
        kind = 'salu'
        if op in ('s_nop', 's_waitcnt', 's_barrier', 's_endpgm', 's_sleep', 's_setprio', 's_branch') or op.startswith('s_cbranch'):
            pass
        elif op.startswith('s_cmp') or op.startswith('s_bitcmp'):
            for o in ops: s |= regs_of(o)
        else:
            d = regs_of(ops[0])
            for o in ops[1:]: s |= regs_of(o)
    return dict(op=op, kind=kind, d=d, s=s, mods=mods, ops=ops)

def check_hazards(lines, verbose=True):
    ins = []
    t = 0
    last_mfma = -100
    for ln, l in enumerate(lines):
        if l.endswith(':') or l.startswith('.') or l.startswith(';'):
            continue
        c = classify(l)
        if c['kind'] == 'mfma':
            t = max(t, last_mfma + 4)
            last_mfma = t
        c['t'] = t; c['ln'] = ln; c['txt'] = l
        if c['op'] == 's_nop':
            t += int(c['ops'][0]) + 1
        else:
            t += 1
        ins.append(c)
    bad = []
    for i, c in enumerate(ins):
        for j in range(i - 1, max(-1, i - 40), -1):
            p = ins[j]
            if p['op'] in ('s_endpgm', 's_branch'):
                break
            gap = c['t'] - p['t'] - 1
            if gap >= 12:
                break
            need = 0
            pv = {r for r in p['d'] if r[0] != 's'}
            ps = {r for r in p['d'] if r[0] == 's'}
            if p['kind'] == 'valu':
                if c['kind'] == 'mfma' and (pv & c['s']): need = max(need, 2)
                if c['kind'] == 'valu' and ('dpp' in c['op'] or 'row_' in c['mods'] or 'quad_perm' in c['mods']) and (pv & c['s']): need = max(need, 2)
                if c['op'].startswith('v_permlane') and (pv & c['s']): need = max(need, 2)
                if c['op'].startswith('v_readlane') or c['op'].startswith('v_readfirstlane'):
                    if pv & c['s']: need = max(need, 1)
                if p['op'].split('_e')[0] in TRANS and c['kind'] == 'valu' and c['op'] not in TRANS and (pv & c['s']): need = max(need, 1)
                if ps and c['kind'] == 'valu' and (ps & c['s']): need = max(need, 2)
                if ps and c['op'].startswith('v_cndmask') and len(c['ops']) == 3 and (ps & regs_of('vcc')): need = max(need, 2)
                if ps and c['kind'] == 'vmem' and (ps & c['s']): need = max(need, 5)
            if p['kind'] == 'mfma':
                if c['kind'] == 'mfma':
                    if p['d'] & c['ab']: need = max(need, 8)
                    if (p['d'] & c['c']) and p['d'] != c['c']: need = max(need, 6)
                    if (p['d'] & c['d']) and not (p['d'] & c['c']): need = max(need, 0)
                elif c['kind'] in ('valu', 'ds', 'vmem'):
                    if p['d'] & (c['s'] | c['d']): need = max(need, 8)
                    if c['kind'] == 'valu' and (p['c'] & c['d']): need = max(need, 3)
            if p['kind'] == 'vmem' and p['op'].startswith('buffer_store') and ('x4' in p['op'] or 'x3' in p['op']):
                data = regs_of(p['ops'][0])
                if c['kind'] == 'valu' and (data & c['d']): need = max(need, 2)
                elif data & c['d']: need = max(need, 1)
            if p['kind'] == 'salu' and (ps & regs_of('m0')) and c['kind'] == 'vmem' and ' lds' in c['mods']:
                need = max(need, 1)
            if gap < need:
                bad.append((p['ln'], p['txt'], c['ln'], c['txt'], gap, need))
    if verbose:
        for b in bad:
            print('HAZARD: line %d "%s" -> line %d "%s": gap %d < %d' % b)
    return bad
```

```python
D = 448; H = 16; NSEG = 64
MAT = 401408
AFR = 0
BFR = AFR + 16 * MAT
XN = BFR + 16 * MAT
XSZ = 2048 * 896
XP = XN + XSZ
MEMC = XP + XSZ
MEMSZ = 64 * 7168
MEMX = MEMC + MEMSZ
PC = MEMX + MEMSZ
PCSZ = 64 * 10240
FLG = PC + PCSZ
FLG_U = FLG
FLG_P = FLG_U + 4096
FLG_H = FLG_P + 4096
FLG_V = FLG_H + 4096
FLG_M = FLG_V + 8192
FLGSZ = 32768
UB = FLG + FLGSZ
USEG = 16 * 28 * 1024
VM = UB + 64 * USEG
VMSEG = 14 * 8192
PX = VM + 64 * VMSEG
PXSEG = 40960
HB = PX + 64 * PXSEG
HSEG = 4 * 28 * 1024
XK = HB + 64 * HSEG
FWR = XK + 64 * 32768
TS = FWR + 262144
WS_END = TS + (1 << 20)
WS_BYTES = 268435456

def dmap(w, t, m):
    ga = m // 4
    if t < 4:
        k = 16 * ga + 8 * (t // 2) + 4 * ((m % 4) // 2) + 2 * (t % 2) + m % 2
        return 64 * w + k
    if t < 6:
        return 8 * (32 + 4 * w + ga) + 4 * ((m % 4) // 2) + 2 * (t % 2) + m % 2
    return 8 * (48 + 4 * (w // 2) + ga) + 4 * ((m % 4) // 2) + 2 * (w % 2) + m % 2

def kperm(a, gb, j):
    return 16 * a + 32 * ((j >> 1) & 1) + 4 * gb + 2 * (j >> 2) + (j & 1)

def fmap(ks, g, e):
    if ks < 12:
        w, a = ks // 3, ks % 3
        return 112 * w + 16 * (2 * a + e // 4) + 4 * g + e % 4
    u = ks - 12
    return 112 * (2 * u + e // 4) + 96 + 4 * g + e % 4

if __name__ == '__main__':
    assert sorted(dmap(w, t, m) for w in range(4) for t in range(7) for m in range(16)) == list(range(448))
    assert sorted(kperm(a, g, j) for a in range(2) for g in range(4) for j in range(8)) == list(range(64))
    assert sorted(fmap(k, g, e) for k in range(14) for g in range(4) for e in range(8)) == list(range(448))
    print(dict(AFR=AFR, BFR=BFR, XN=XN, XP=XP, MEMC=MEMC, MEMX=MEMX, PC=PC, FLG=FLG, UB=UB, VM=VM, PX=PX, HB=HB, TS=TS, END=WS_END))
```

```python
from asm import *
from layout import *
from prep import srd, f2u

OOB = 0x40000000
NEGBIG = f2u(-1.4426950e9)

def WREG(b):
    return 256 + 8 * b if b < 32 else 120 + 8 * (b - 32)

class Ctx:
    def __init__(self, a, opts):
        self.a = a; self.opts = opts
        self.ts = opts.get('ts', 0)
    def spin_head(self, name):
        l = self.a.newlabel(name)
        self.a.label(l)
        self.a('s_sub_u32 s23, s23, 1\ns_cbranch_scc1 M_exit')
        return l
    def check_poison(self, regs, tmp):
        a = self.a
        a('v_max3_u32 v%d, v%d, v%d, v%d' % (tmp, regs[0], regs[1], regs[2]))
        i = 3
        while i + 1 < len(regs):
            a('v_max3_u32 v%d, v%d, v%d, v%d' % (tmp, tmp, regs[i], regs[i + 1])); i += 2
        if i < len(regs):
            a('v_max_u32 v%d, v%d, v%d' % (tmp, tmp, regs[i]))
        a('v_cmp_eq_u32 vcc, -1, v%d' % tmp)
    def wait_flags(self, name, soff, n, tmp):
        a = self.a
        l = self.spin_head(name)
        a('buffer_load_dword%s %s, off, s[4:7], s%d sc1' % ('' if n == 1 else 'x%d' % n, vr(tmp, n), soff))
        a('s_waitcnt vmcnt(0)')
        for i in range(1, n):
            a('v_min_u32 v%d, v%d, v%d' % (tmp, tmp, tmp + i))
        a('v_cmp_eq_u32 vcc, 0, v%d\ns_cbranch_vccnz %s' % (tmp, l))
    def stamp(self, i):
        if self.ts:
            self.a('s_memtime s[%d:%d]' % (64 + 2 * i, 65 + 2 * i))
    def flush_stamps(self, n, role_slot_sgpr, tmp):
        if not self.ts: return
        a = self.a
        a('s_waitcnt lgkmcnt(0)')
        a('s_lshl_b32 s62, s%d, 6\ns_add_u32 s62, s62, s24\ns_lshl_b32 s62, s62, 6\ns_add_u32 s62, s62, 0x%x' % (role_slot_sgpr, TS))
        for i in range(n):
            a('v_mov_b32 v%d, s%d' % (tmp, 64 + 2 * i))
            a('s_mov_b64 exec, 1')
            a('buffer_store_dword v%d, off, s[4:7], s62 offset:%d' % (tmp, 4 * i))
            a('s_mov_b64 exec, -1')

def load_weights(a, blocks, sbase, vl16):
    n = 0
    for reg, off in blocks:
        a('s_add_u32 s63, s%d, 0x%x' % (sbase, off))
        a('buffer_load_dwordx4 %s, v%d, s[4:7], s63 offen' % (R(reg, 4), vl16))
        a('buffer_load_dwordx4 %s, v%d, s[4:7], s63 offen offset:1024' % (R(reg + 4, 4), vl16))
        n += 2
        if n > 48 and n % 8 == 0:
            a('s_waitcnt vmcnt(48)')

def smf(a, d, x, wreg, idx):
    a('v_smfmac_f32_16x16x64_bf16 %s, %s, %s, v%d' % (vr(d, 4), vr(x, 4), R(wreg, 8), idx))
def cvt(a, d, s0, s1):
    a('v_cvt_pk_bf16_f32 v%d, v%d, v%d' % (d, s0, s1))

def gen_chainA(c, w):
    a = c.a
    M = lambda p: 4 * p
    ACC = lambda t: 28 + 4 * t
    KEY0 = [56, 64, 72]
    KEY1 = [56, 0, 40]
    A2a, A2b, D2a, D2b, TS0, TS1 = 80, 84, 88, 92, 96, 116
    SEL, SEL6, IDX, VL, VMK0, VMK1, VDX0, VDX1, VSW, VSR0, VSR, VPST = 100, 104, 106, 107, 108, 109, 110, 111, 112, 113, 114, 115
    XK = 8192 + w * 8192; SB = 40960; NEG = 47616
    kk = lambda p: (2 * w + p) % 7
    a.label('A_w%d' % w)
    a('v_mov_b32 v%d, v1\nv_lshlrev_b32 v%d, 4, v1' % (A2a, VL))
    LN = A2a
    a('s_mul_i32 s26, s25, 0x%x\ns_add_u32 s26, s26, 0x%x' % (MAT, AFR + w * 49 * 2048))
    load_weights(a, [(WREG(t * 7 + p), (t * 7 + kk(p)) * 2048) for p in range(7) for t in range(7)], 26, VL)
    a('v_and_b32 v0, 15, v%d\nv_lshrrev_b32 v1, 4, v%d\nv_and_b32 v2, 7, v%d\nv_bfe_u32 v3, v%d, 3, 1' % (LN, LN, LN, LN))
    a('v_mov_b32 v4, 0x4444\nv_mov_b32 v5, 0xeeee\nv_cmp_eq_u32 vcc, 1, v3\ns_nop 1\nv_cndmask_b32 v%d, v4, v5, vcc' % IDX)
    a('v_and_b32 v4, 1, v1\nv_lshlrev_b32 v4, 2, v4\nv_sub_u32 v4, v2, v4')
    for dw in range(2):
        a('v_mov_b32 v6, 0')
        a('v_cmp_eq_u32 vcc, %d, v4\nv_mov_b32 v5, 0x3f80\ns_nop 0\nv_cndmask_b32 v6, v6, v5, vcc' % (2 * dw))
        a('v_cmp_eq_u32 vcc, %d, v4\nv_mov_b32 v5, 0x3f800000\ns_nop 0\nv_cndmask_b32 v6, v6, v5, vcc' % (2 * dw + 1))
        a('v_cmp_eq_u32 vcc, 0, v3\ns_nop 1\nv_cndmask_b32 v%d, 0, v6, vcc' % (SEL + dw))
        a('v_cmp_eq_u32 vcc, 1, v3\ns_nop 1\nv_cndmask_b32 v%d, 0, v6, vcc' % (SEL + 2 + dw))
        a('v_mov_b32 v%d, v%d' % (SEL6 + dw, SEL + 2 * (w % 2) + dw))
    a('v_lshlrev_b32 v4, 4, v2\nv_lshl_add_u32 v%d, v1, 8, v4' % VMK0)
    a('v_lshrrev_b32 v5, 1, v1\nv_lshl_add_u32 v4, v5, 8, v4')
    a('v_and_b32 v6, 1, v1\nv_cmp_eq_u32 vcc, 1, v6')
    a('v_mov_b32 v7, %d\nv_mov_b32 v8, %d\nv_cndmask_b32 v7, v7, v8, vcc\nv_add_u32 v%d, v4, v7' % ((4 + w // 2) * 1024 + (w % 2) * 128, 6 * 1024 + (w // 2) * 128, VMK1))
    a('v_mul_u32_u24 v4, 0x380, v0\nv_lshl_add_u32 v%d, v1, 4, v4\nv_add_u32 v%d, %d, v%d' % (VDX0, VDX0, 8 * w * 16, VDX0))
    a('v_lshl_add_u32 v4, v5, 4, v4')
    a('v_mov_b32 v7, %d\nv_mov_b32 v8, %d\nv_cndmask_b32 v7, v7, v8, vcc\nv_add_u32 v%d, v4, v7' % ((32 + 4 * w) * 16, (48 + 4 * (w // 2)) * 16, VDX1))
    a('v_lshl_add_u32 v4, v6, 2, v5\nv_mul_u32_u24 v4, 208, v4\nv_lshl_add_u32 v4, v0, 2, v4\nv_add_u32 v%d, %d, v4' % (VSW, SB + w * 1664))
    a('v_lshrrev_b32 v4, 5, v%d\nv_and_b32 v9, 31, v%d' % (LN, LN))
    a('v_cmp_gt_u32 s[28:29], 20, v9\nv_add_u32 v10, %d, v4\nv_mul_u32_u24 v11, 208, v10' % (2 * w))
    a('v_cndmask_b32 v12, 0, v9, s[28:29]\nv_lshl_add_u32 v11, v12, 3, v11\nv_add_u32 v%d, %d, v11' % (VSR, SB))
    a('v_mov_b32 v12, %d\nv_cndmask_b32 v%d, v12, v%d, s[28:29]' % (NEG, VSR0, VSR))
    a('s_and_b32 s27, s25, 1\ns_bfe_u32 s30, s25, 0x10001\ns_lshr_b32 s31, s25, 2')
    a('v_bfe_u32 v12, v9, 2, 1\nv_lshlrev_b32 v12, 8, v12')
    a('v_and_b32 v13, 1, v9\nv_lshl_add_u32 v12, v13, 7, v12')
    a('v_bfe_u32 v14, v9, 1, 1\nv_lshl_add_u32 v12, v14, 3, v12')
    a('v_bfe_u32 v15, v9, 3, 1\nv_lshl_add_u32 v12, v15, 2, v12')
    a('s_lshl_b32 s32, s30, 10\ns_lshl_b32 s33, s27, 9\ns_add_u32 s32, s32, s33\nv_add_u32 v12, s32, v12')
    a('v_lshlrev_b32 v14, 7, v14\nv_lshl_add_u32 v14, v13, 2, v14')
    a('s_lshl_b32 s32, s27, 8\ns_lshl_b32 s33, s30, 3\ns_add_u32 s32, s32, s33\ns_add_u32 s32, s32, 2048\nv_add_u32 v14, s32, v14')
    a('v_cmp_gt_u32 vcc, 16, v9\ns_nop 1\nv_cndmask_b32 v12, v14, v12, vcc\nv_lshl_add_u32 v12, v10, 4, v12')
    a('s_mul_i32 s32, s31, 2560\nv_add_u32 v12, s32, v12\nv_mov_b32 v13, 0x%x\nv_cndmask_b32 v%d, v13, v12, s[28:29]' % (OOB, VPST))
    if w == 0:
        a('v_mov_b32 v4, 0xff800000\nv_mov_b32 v5, v4\nv_mov_b32 v6, %d\nds_write_b64 v6, v[4:5]' % NEG)
    a('s_mov_b32 s24, 0\ns_mov_b32 s26, 0x%x\ns_mov_b32 s27, 0x%x\ns_mov_b32 s28, 0x%x' % (MEMC, PC, XN))
    def dma_keys():
        for blk in range(2):
            for tau in range(2):
                for aa in range(2):
                    a('s_mov_b32 m0, %d' % (XK + (blk * 4 + tau * 2 + aa) * 1024))
                    a('s_add_u32 s29, s28, %d' % (tau * 16 * 896 + aa * (64 if blk == 0 else 32)))
                    a('buffer_load_dwordx4 v%d, s[4:7], s29 offen lds' % (VDX0 if blk == 0 else VDX1))
    top = 'A_top%d' % w
    a.label(top)
    dma_keys()
    for r in range(28):
        a('v_mov_b32 v%d, 0' % (ACC(0) + r))
    a('s_add_u32 s30, s26, %d\ns_add_u32 s31, s26, %d' % (kk(0) * 1024, kk(1) * 1024))
    c.stamp(0)
    l = c.spin_head('Apoll')
    a('buffer_load_dwordx4 %s, v%d, s[4:7], s30 offen sc1' % (vr(M(0), 4), VL))
    a('buffer_load_dwordx4 %s, v%d, s[4:7], s31 offen sc1' % (vr(M(1), 4), VL))
    a('s_waitcnt vmcnt(0)')
    c.check_poison(list(range(8)), A2a)
    a('s_cbranch_vccnz %s' % l)
    c.stamp(1)
    T = lambda t, p: smf(a, ACC(t), M(p), WREG(t * 7 + p), IDX)
    a('ds_write_b128 v%d, %s offset:%d' % (VL, vr(M(0), 4), kk(0) * 1024))
    if w < 3:
        a('ds_write_b128 v%d, %s offset:%d' % (VL, vr(M(1), 4), kk(1) * 1024))
    for t in range(4): T(t, 0)
    a('s_waitcnt lgkmcnt(0)\ns_barrier')
    def rdkey(blk, tau, aa):
        dst = (KEY0 if blk == 0 else KEY1)[tau] + 4 * aa
        if tau < 2:
            a('ds_read_b128 %s, v%d offset:%d' % (vr(dst, 4), VL, XK + (blk * 4 + tau * 2 + aa) * 1024))
        elif blk == 0:
            a('ds_read_b128 %s, v%d offset:%d' % (vr(dst, 4), VMK0, w * 1024 + aa * 128))
        else:
            a('ds_read_b128 %s, v%d offset:%d' % (vr(dst, 4), VMK1, aa * 512))
    rd = [lambda p=p: a('ds_read_b128 %s, v%d offset:%d' % (vr(M(p), 4), VL, kk(p) * 1024)) for p in range(2, 7)]
    rd += [lambda tau=tau, aa=aa: rdkey(0, tau, aa) for tau in range(3) for aa in range(2)]
    rd[0](); rd[1]()
    seq = [(t, 0) for t in range(4, 7)] + [(t, 1) for t in range(7)]
    k = 2
    for (t, p) in seq:
        T(t, p)
        if k < len(rd): rd[k](); k += 1
    assert k == len(rd)
    a('s_waitcnt lgkmcnt(6)')
    def cvt_tile(t, dst):
        return [lambda: cvt(a, dst, ACC(t), ACC(t) + 1), lambda: cvt(a, dst + 1, ACC(t) + 2, ACC(t) + 3)]
    def cvt_d2(src, dst):
        return [lambda: cvt(a, dst, src, src + 1), lambda: cvt(a, dst + 1, src + 2, src + 3)]
    def zero(t, lo): return lambda: a('v_mov_b32 v%d, 0\nv_mov_b32 v%d, 0' % (ACC(t) + lo, ACC(t) + lo + 1))
    def mt(d, src): return lambda: a('v_mfma_f32_16x16x32_bf16 %s, %s, %s, 0' % (vr(d, 4), vr(src, 4), vr(SEL, 4)))
    S = lambda tau, blk: (lambda: smf(a, ACC(tau), TS0 if blk == 0 else TS1, (KEY0 if blk == 0 else KEY1)[tau], IDX))
    E = lambda: None
    both = lambda *fs: (lambda: [f() for f in fs])
    fill = {t: [E] * 5 for t in range(7)}
    fill[0] = [E, lambda: rdkey(1, 1, 0), lambda: rdkey(1, 1, 1), E, E]
    fill[1] = [E, E, cvt_tile(0, A2a)[0], cvt_tile(0, A2a)[1], zero(0, 0)]
    fill[2] = [zero(0, 2), E, cvt_tile(1, A2a + 2)[0], cvt_tile(1, A2a + 2)[1], zero(1, 0)]
    fill[3] = [both(mt(D2a, A2a), zero(1, 2)), E, cvt_tile(2, A2b)[0], cvt_tile(2, A2b)[1], zero(2, 0)]
    fill[4] = [both(zero(2, 2)), cvt_d2(D2a, TS0)[0], both(cvt_d2(D2a, TS0)[1], cvt_tile(3, A2b + 2)[0]), cvt_tile(3, A2b + 2)[1], E]
    fill[5] = [mt(D2b, A2b), E, both(cvt_tile(4, A2a)[0], cvt_tile(4, A2a)[1]), both(*cvt_d2(D2b, TS0 + 2)), lambda: [rdkey(1, 2, 0), rdkey(1, 2, 1)]]
    fill[6] = [both(lambda: a('s_waitcnt lgkmcnt(2)'), S(0, 0)), lambda: [rdkey(1, 0, 0), rdkey(1, 0, 1)], cvt_tile(5, A2a + 2)[0], cvt_tile(5, A2a + 2)[1], E]
    for t in range(7):
        for j in range(5):
            T(t, 2 + j)
            fill[t][j]()
    c.stamp(2)
    mt(D2a, A2a)()
    S(1, 0)()
    for f in cvt_tile(6, A2b): f()
    a('s_nop 1')
    a('v_mfma_f32_16x16x16_bf16 %s, %s, %s, 0' % (vr(D2b, 4), vr(A2b, 2), vr(SEL6, 2)))
    S(2, 0)()
    for f in cvt_d2(D2a, TS1): f()
    a('s_waitcnt lgkmcnt(0)\ns_nop 0')
    for f in cvt_d2(D2b, TS1 + 2): f()
    a('s_nop 1')
    S(0, 1)(); S(1, 1)(); S(2, 1)()
    col = [0, 64, 128]
    for tau in range(3):
        r = ACC(tau)
        if tau == 2: a('s_nop 0')
        a('v_permlane32_swap_b32 v%d, v%d\nv_permlane32_swap_b32 v%d, v%d' % (r, r + 1, r + 2, r + 3))
        a('v_add_f32 v%d, v%d, v%d\nv_add_f32 v%d, v%d, v%d' % (r, r, r + 1, r + 2, r + 2, r + 3))
        a('ds_write2_b32 v%d, v%d, v%d offset0:%d offset1:%d' % (VSW, r, r + 2, col[tau] // 4, col[tau] // 4 + 104))
    a('s_waitcnt lgkmcnt(0)\ns_barrier')
    c.stamp(3)
    q = 40
    a('ds_read_b64 %s, v%d' % (vr(q, 2), VSR0))
    for p in range(1, 4):
        a('ds_read_b64 %s, v%d offset:%d' % (vr(q + 2 * p, 2), VSR, p * 1664))
    a('s_waitcnt lgkmcnt(2)')
    a('v_add_f32 v%d, v%d, v%d\nv_add_f32 v%d, v%d, v%d' % (q, q, q + 2, q + 1, q + 1, q + 3))
    a('s_waitcnt lgkmcnt(0)')
    a('v_add_f32 v%d, v%d, v%d\nv_add_f32 v%d, v%d, v%d' % (q + 4, q + 4, q + 6, q + 5, q + 5, q + 7))
    a('v_add_f32 v%d, v%d, v%d\nv_add_f32 v%d, v%d, v%d' % (q, q, q + 4, q + 1, q + 1, q + 5))
    def reduce32(op, r, tmp):
        for sh in (8, 4, 2, 1):
            a('s_nop 1\n%s_dpp v%d, v%d, v%d row_ror:%d row_mask:0xf bank_mask:0xf' % (op, r, r, r, sh))
        a('v_mov_b32 v%d, v%d\ns_nop 1\nv_permlane16_swap_b32 v%d, v%d\n%s v%d, v%d, v%d' % (tmp, r, tmp, r, op, r, r, tmp))
    a('v_max_f32 v%d, v%d, v%d' % (q + 2, q, q + 1))
    reduce32('v_max_f32', q + 2, q + 3)
    a('v_sub_f32 v%d, v%d, v%d\nv_sub_f32 v%d, v%d, v%d' % (q, q, q + 2, q + 1, q + 1, q + 2))
    a('v_exp_f32 v%d, v%d\nv_exp_f32 v%d, v%d\ns_nop 0' % (q, q, q + 1, q + 1))
    a('v_add_f32 v%d, v%d, v%d' % (q + 2, q, q + 1))
    reduce32('v_add_f32', q + 2, q + 3)
    a('v_rcp_f32 v%d, v%d\ns_nop 0' % (q + 2, q + 2))
    a('v_mul_f32 v%d, v%d, v%d\nv_mul_f32 v%d, v%d, v%d' % (q, q, q + 2, q + 1, q + 1, q + 2))
    cvt(a, q, q, q + 1)
    a('v_min_u32 v%d, -2, v%d' % (q, q))
    a('buffer_store_dword v%d, v%d, s[4:7], s27 offen' % (q, VPST))
    c.stamp(4)
    c.flush_stamps(5, 59, q + 4)
    a('s_add_u32 s24, s24, 1\ns_add_u32 s26, s26, 7168\ns_add_u32 s27, s27, 10240\ns_add_u32 s28, s28, %d' % (32 * 896))
    a('s_cmp_lt_u32 s24, 63\ns_cbranch_scc1 %s' % top)
    a('s_endpgm')

def gen_chainB(c):
    a = c.a
    M = lambda k: 4 * k
    UU = lambda q, tau: 28 + 16 * q + 8 * tau
    VA = lambda i: 60 + 4 * i
    VMR = lambda tau: 76 + 4 * tau
    ST = [84, 92]
    IDX, VL, VP0, VP1, VPM, VRW, VRR, VMS, VFL, TMP = 100, 101, 102, 103, 104, 105, 106, 107, 108, 109
    RB = 8192; WL = 16384
    a.label('B_role')
    LN = 110
    a('v_mov_b32 v%d, v1\nv_lshlrev_b32 v%d, 4, v1' % (LN, VL))
    a('s_mul_i32 s26, s20, 0x%x\ns_mul_i32 s27, s25, %d\ns_add_u32 s26, s26, s27\ns_add_u32 s26, s26, 0x%x' % (4 * MAT, 2 * 7 * 2048, BFR))
    tiles = [(2 * q + hp, tau) for q in range(2) for tau in range(2) for hp in range(2)]
    a('s_mul_i32 s34, s20, 14336\ns_add_u32 s34, s34, %d' % WL)
    hl, tau = tiles[7]
    for i in range(14):
        a('s_add_u32 m0, s34, %d\ns_add_u32 s63, s26, 0x%x' % (i * 1024, hl * MAT + tau * 7 * 2048 + i * 1024))
        a('buffer_load_dwordx4 v%d, s[4:7], s63 offen lds' % VL)
    load_weights(a, [(WREG(tt * 7 + k), tiles[tt][0] * MAT + (tiles[tt][1] * 7 + k) * 2048) for tt in range(7) for k in range(7)], 26, VL)
    a('v_and_b32 v0, 15, v%d\nv_lshrrev_b32 v1, 4, v%d\nv_and_b32 v2, 7, v%d\nv_bfe_u32 v3, v%d, 3, 1' % (LN, LN, LN, LN))
    a('v_mov_b32 v4, 0x4444\nv_mov_b32 v5, 0xeeee\nv_cmp_eq_u32 vcc, 1, v3\ns_nop 1\nv_cndmask_b32 v%d, v4, v5, vcc' % IDX)
    a('v_lshlrev_b32 v4, 7, v1\nv_lshl_add_u32 v4, v2, 4, v4\nv_add_u32 v4, 2048, v4\nv_mov_b32 v5, 0x%x\nv_cndmask_b32 v%d, v4, v5, vcc' % (OOB, VPM))
    a('s_lshl_b32 s27, s20, 11\ns_add_u32 s28, s27, 1024\ns_min_u32 s28, s28, 6144')
    a('v_add_u32 v%d, s27, v%d\nv_add_u32 v%d, s28, v%d' % (VP0, VL, VP1, VL))
    a('v_and_b32 v6, 1, v1\nv_lshrrev_b32 v5, 1, v1\nv_lshl_add_u32 v4, v6, 2, v5\nv_mul_u32_u24 v4, 144, v4\nv_lshl_add_u32 v4, v0, 2, v4')
    a('s_mul_i32 s27, s20, 1152\ns_add_u32 s27, s27, %d\nv_add_u32 v%d, s27, v4' % (RB, VRW))
    a('v_bfe_u32 v4, v%d, 2, 3\nv_and_b32 v5, 3, v%d\nv_mul_u32_u24 v6, 144, v4\nv_lshl_add_u32 v6, v5, 3, v6' % (LN, LN))
    a('s_lshl_b32 s27, s20, 5\ns_add_u32 s27, s27, %d\nv_add_u32 v%d, s27, v6' % (RB, VRR))
    a('s_lshr_b32 s27, s25, 1\ns_lshl_b32 s27, s27, 10\ns_and_b32 s28, s25, 1\ns_lshl_b32 s28, s28, 7\ns_add_u32 s27, s27, s28\ns_lshl_b32 s28, s20, 8\ns_add_u32 s27, s27, s28')
    a('v_lshlrev_b32 v6, 2, v%d\nv_add_u32 v6, s27, v6\nv_mov_b32 v7, 0x%x\nv_cmp_gt_u32 vcc, 32, v%d\ns_nop 1\nv_cndmask_b32 v%d, v7, v6, vcc' % (LN, OOB, LN, VMS))
    a('s_lshl_b32 s27, s20, 4\nv_lshlrev_b32 v6, 6, v%d\nv_add_u32 v%d, s27, v6' % (LN, VFL))
    a('v_add_u32 v%d, s34, v%d' % (LN, VL))
    VWL = LN
    a('s_mov_b32 s24, 0\ns_mov_b32 s26, 0x%x\ns_mov_b64 s[60:61], 0' % MEMC)
    a('s_mul_i32 s27, s20, 2560\ns_add_u32 s27, s27, 0x%x' % PC)
    a('s_mul_i32 s28, s20, %d\ns_lshl_b32 s29, s25, 11\ns_add_u32 s28, s28, s29\ns_add_u32 s28, s28, 0x%x' % (4 * 28 * 1024, UB))
    a('s_lshl_b32 s29, s25, 13\ns_lshl_b32 s30, s20, 11\ns_add_u32 s29, s29, s30\ns_add_u32 s29, s29, 0x%x' % VM)
    a('s_lshl_b32 s30, s20, 6\ns_lshl_b32 s31, s25, 2\ns_add_u32 s30, s30, s31\ns_add_u32 s30, s30, 0x%x' % FLG_V)
    a('s_mov_b32 s35, 0x%x' % FLG_U)
    a.label('B_top')
    c.stamp(0)
    l = c.spin_head('Bpoll')
    a('buffer_load_dwordx4 %s, v%d, s[4:7], s26 offen sc1' % (vr(ST[0], 4), VP0))
    a('buffer_load_dwordx4 %s, v%d, s[4:7], s26 offen sc1' % (vr(ST[0] + 4, 4), VP1))
    a('s_waitcnt vmcnt(0)')
    c.check_poison(list(range(ST[0], ST[0] + 8)), TMP)
    a('s_cbranch_vccnz %s' % l)
    c.stamp(1)
    a('ds_write_b128 v%d, %s\nds_write_b128 v%d, %s' % (VP0, vr(ST[0], 4), VP1, vr(ST[0] + 4, 4)))
    a('s_cmp_eq_u32 s24, 63\ns_cbranch_scc1 B_nou')
    a('s_bitcmp1_b64 s[60:61], s24\ns_cbranch_scc1 B_uok')
    l = c.spin_head('Bufl')
    a('buffer_load_dwordx4 v[28:31], v%d, s[4:7], s35 offen sc1\ns_waitcnt vmcnt(0)' % VFL)
    a('v_min_u32 v28, v28, v29\nv_min3_u32 v28, v28, v30, v31\nv_cmp_ne_u32 s[60:61], 0, v28\ns_nop 1')
    a('s_bitcmp0_b64 s[60:61], s24\ns_cbranch_scc1 %s' % l)
    a.label('B_uok')
    for q in range(2):
        for hp in range(2):
            a('s_add_u32 s31, s28, %d' % ((2 * q + hp) * 28 * 1024))
            for tau in range(2):
                a('buffer_load_dwordx4 %s, v%d, s[4:7], s31 offen offset:%d sc1' % (vr(UU(q, tau) + 4 * hp, 4), VL, tau * 1024))
    a.label('B_nou')
    for r in range(8): a('v_mov_b32 v%d, 0' % (VA(0) + r))
    a('s_waitcnt lgkmcnt(0)\ns_barrier')
    for k in range(7):
        a('ds_read_b128 %s, v%d offset:%d' % (vr(M(k), 4), VL, k * 1024))
    def post(pair):
        q, tau = pair // 2, pair % 2
        x, y = VA(2 * (pair % 2)), VA(2 * (pair % 2) + 1)
        fs = []
        for r in range(4):
            fs.append(lambda r=r: a('v_permlane32_swap_b32 v%d, v%d' % (x + r, y + r)))
        for r in range(4):
            fs.append(lambda r=r: a('v_add_f32 v%d, v%d, v%d' % (x + r, x + r, y + r)))
        fs.append(lambda: cvt(a, VMR(tau) + 2 * q, x, x + 1))
        fs.append(lambda: cvt(a, VMR(tau) + 2 * q + 1, x + 2, x + 3))
        return fs
    def zer(pair):
        x = VA(2 * (pair % 2))
        return [lambda r=r: a('v_mov_b32 v%d, 0\nv_mov_b32 v%d, 0' % (x + 2 * r, x + 2 * r + 1)) for r in range(4)]
    def ldw(k):
        return lambda: a('ds_read_b128 %s, v%d offset:%d\nds_read_b128 %s, v%d offset:%d' % (vr(ST[k % 2], 4), VWL, k * 2048, vr(ST[k % 2] + 4, 4), VWL, k * 2048 + 1024))
    for pair in range(4):
        fl = []
        if pair == 0: fl = [None] * 3 + zer(1)
        else:
            pp = post(pair - 1)
            fl = [None, None] + pp[:4] + [lambda f=pp[4], g=pp[5]: (f(), g()), lambda f=pp[6], g=pp[7]: (f(), g()), lambda f=pp[8], g=pp[9]: (f(), g())]
            if pair < 3: fl += zer(pair + 1)
        for j in range(14):
            tt = 2 * pair + j // 7; k = j % 7
            if pair == 0 and j < 7:
                a('s_waitcnt lgkmcnt(%d)' % (6 - j))
            if tt < 7:
                smf(a, VA(2 * (pair % 2) + j // 7), M(k), WREG(tt * 7 + k), IDX)
                if tt == 6 and k >= 5: ldw(k - 5)()
            else:
                a('s_waitcnt lgkmcnt(%d)' % (2 if k < 6 else 0))
                smf(a, VA(3), M(k), ST[k % 2], IDX)
                if k + 2 < 7: ldw(k + 2)()
            if j < len(fl) and fl[j]: fl[j]()
    a('s_nop 7')
    for f in post(3): f()
    for tau in range(2):
        a('buffer_store_dwordx4 %s, v%d, s[4:7], s29 offen offset:%d sc1' % (vr(VMR(tau), 4), VL, tau * 1024))
    a('s_cmp_eq_u32 s24, 63\ns_cbranch_scc1 B_last')
    c.stamp(2)
    l = c.spin_head('BpollP')
    a('buffer_load_dwordx4 v[8:11], v%d, s[4:7], s27 offen sc1' % VPM)
    a('buffer_load_dwordx4 v[0:3], v%d, s[4:7], s27 offen sc1' % VL)
    a('buffer_load_dwordx4 v[4:7], v%d, s[4:7], s27 offen offset:1024 sc1' % VL)
    a('s_waitcnt vmcnt(0)')
    c.check_poison(list(range(12)), TMP)
    a('s_cbranch_vccnz %s' % l)
    c.stamp(3)
    for tau in range(2):
        a('v_mfma_f32_16x16x32_bf16 %s, v[8:11], %s, 0' % (vr(VA(tau), 4), vr(VMR(tau), 4)))
        smf(a, VA(tau), 0, UU(0, tau), IDX)
        smf(a, VA(tau), 4, UU(1, tau), IDX)
    for tau in range(2):
        r = VA(tau)
        if tau == 1: a('s_nop 2')
        a('v_permlane32_swap_b32 v%d, v%d\nv_permlane32_swap_b32 v%d, v%d' % (r, r + 1, r + 2, r + 3))
        a('v_add_f32 v%d, v%d, v%d\nv_add_f32 v%d, v%d, v%d' % (r, r, r + 1, r + 2, r + 2, r + 3))
        a('ds_write2_b32 v%d, v%d, v%d offset0:%d offset1:%d' % (VRW, r, r + 2, 16 * tau, 16 * tau + 72))
    a('s_add_u32 s26, s26, 7168')
    a('s_waitcnt lgkmcnt(0)\ns_barrier')
    for p in range(4):
        a('ds_read_b64 %s, v%d offset:%d' % (vr(12 + 2 * p, 2), VRR, p * 1152))
    a('s_waitcnt lgkmcnt(2)\nv_add_f32 v12, v12, v14\nv_add_f32 v13, v13, v15')
    a('s_waitcnt lgkmcnt(0)\nv_add_f32 v16, v16, v18\nv_add_f32 v17, v17, v19\nv_add_f32 v12, v12, v16\nv_add_f32 v13, v13, v17')
    cvt(a, 12, 12, 13)
    a('v_min_u32 v12, -2, v12')
    a('buffer_store_dword v12, v%d, s[4:7], s26 offen' % VMS)
    c.stamp(4)
    a('v_mov_b32 v13, 1\ns_mov_b64 exec, 1\nbuffer_store_dword v13, off, s[4:7], s30 sc1\ns_mov_b64 exec, -1')
    c.flush_stamps(5, 59, 14)
    a('s_add_u32 s24, s24, 1\ns_add_u32 s27, s27, 10240\ns_add_u32 s28, s28, 0x%x\ns_add_u32 s29, s29, 0x%x\ns_add_u32 s30, s30, 256' % (USEG, VMSEG))
    a('s_branch B_top')
    a.label('B_last')
    a('s_waitcnt vmcnt(0)')
    a('v_mov_b32 v13, 1\ns_mov_b64 exec, 1\nbuffer_store_dword v13, off, s[4:7], s30 sc1')
    a('s_endpgm')

def gen_relay(c):
    a = c.a
    a.label('R_role')
    a('s_cmp_lg_u32 s20, 0\ns_cbranch_scc1 M_exit')
    a('v_lshlrev_b32 v2, 4, v1\ns_mov_b32 s24, 1\ns_mov_b32 s26, 0x%x\ns_mov_b32 s27, 0x%x' % (MEMC + 7168, MEMX + 7168))
    a.label('R_top')
    a('s_add_u32 s28, s26, 4096\ns_add_u32 s29, s27, 4096')
    l = c.spin_head('Rpoll')
    for k in range(7):
        a('buffer_load_dwordx4 %s, v2, s[4:7], s%d offen offset:%d sc1' % (vr(4 + 4 * k, 4), 26 if k < 4 else 28, (k % 4) * 1024))
    a('s_waitcnt vmcnt(0)')
    c.check_poison(list(range(4, 32)), 3)
    a('s_cbranch_vccnz %s' % l)
    for k in range(7):
        a('buffer_store_dwordx4 %s, v2, s[4:7], s%d offen offset:%d sc1' % (vr(4 + 4 * k, 4), 27 if k < 4 else 29, (k % 4) * 1024))
    a('s_add_u32 s24, s24, 1\ns_add_u32 s26, s26, 7168\ns_add_u32 s27, s27, 7168')
    a('s_waitcnt vmcnt(0)')
    a('s_cmp_lt_u32 s24, 64\ns_cbranch_scc1 R_top')
    a('s_endpgm')

from workers import gen_workers

def gen_main(a, opts):
    c = Ctx(a, opts)
    a.label('main_kernel')
    a('s_load_dwordx2 s[36:37], s[0:1], 0')
    a('s_load_dwordx8 s[40:47], s[0:1], 64')
    a('s_load_dwordx2 s[48:49], s[0:1], 96')
    a('v_lshrrev_b32 v2, 6, v0\nv_and_b32 v1, 63, v0\ns_nop 0\nv_readfirstlane_b32 s20, v2')
    a('s_getreg_b32 s21, hwreg(HW_REG_XCC_ID, 0, 4)')
    a('s_mov_b32 s23, 0x100000')
    a('s_waitcnt lgkmcnt(0)')
    srd(a, 4, 48, WS_BYTES)
    srd(a, 16, 46, 256)
    a('s_cmp_ge_u32 s21, 8\ns_cbranch_scc1 M_exit')
    a('v_mov_b32 v3, 0')
    a('s_cmp_lg_u32 s20, 0\ns_cbranch_scc1 M_tk')
    a('s_lshl_b32 s22, s21, 5\nv_mov_b32 v2, 1\ns_mov_b64 exec, 1')
    a('buffer_atomic_add v2, off, s[16:19], s22 sc0\ns_waitcnt vmcnt(0)\nds_write_b32 v3, v2\ns_mov_b64 exec, -1')
    a.label('M_tk')
    a('s_waitcnt lgkmcnt(0)\ns_barrier\nds_read_b32 v2, v3\ns_waitcnt lgkmcnt(0)\nv_readfirstlane_b32 s22, v2\ns_barrier')
    a('s_cmp_ge_u32 s22, 32\ns_cbranch_scc1 M_exit')
    a('s_lshl_b32 s59, s21, 5\ns_add_u32 s59, s59, s22\ns_lshl_b32 s59, s59, 2\ns_add_u32 s59, s59, s20\ns_and_b32 s59, s59, 127')
    a('s_cmp_lg_u32 s21, 0\ns_cbranch_scc1 W_roles')
    a('s_cmp_eq_u32 s22, 30\ns_cbranch_scc1 R_role')
    a('s_cmp_eq_u32 s22, 31\ns_cbranch_scc1 M_exit')
    a('s_sub_u32 s25, s22, 16\ns_cmp_ge_u32 s22, 16\ns_cbranch_scc1 B_role')
    a('s_mov_b32 s25, s22')
    for w in range(1, 4):
        a('s_cmp_eq_u32 s20, %d\ns_cbranch_scc1 A_w%d' % (w, w))
    for w in range(4):
        gen_chainA(c, w)
    a.label('M_exit')
    a('s_endpgm')
    gen_chainB(c)
    gen_relay(c)
    gen_workers(c)
```

```python
from asm import *
from layout import *
import struct
def f2u(x): return struct.unpack('<I', struct.pack('<f', x))[0]

def srd(a, d, ptr, size, off=0):
    if off:
        a('s_add_u32 s%d, s%d, 0x%x' % (d, ptr, off))
        a('s_addc_u32 s%d, s%d, 0' % (d + 1, ptr + 1))
    else:
        a('s_mov_b32 s%d, s%d' % (d, ptr))
        a('s_mov_b32 s%d, s%d' % (d + 1, ptr + 1))
    a('s_mov_b32 s%d, 0x%x' % (d + 2, size))
    a('s_mov_b32 s%d, 0x20000' % (d + 3))

WSZ = 448 * 16 * 256 * 2

def gen_prep(a):
    a.label('prep_kernel')
    a('s_cmp_ge_u32 s2, 256\ns_cbranch_scc1 P_end')
    a('s_load_dwordx4 s[36:39], s[0:1], 0')
    a('s_load_dwordx8 s[40:47], s[0:1], 16')
    a('s_load_dwordx2 s[48:49], s[0:1], 96')
    a('v_lshrrev_b32 v2, 6, v0\nv_and_b32 v1, 63, v0\ns_nop 0\nv_readfirstlane_b32 s20, v2')
    a('s_and_b32 s21, s2, 7\ns_lshr_b32 s22, s2, 3')
    a('s_waitcnt lgkmcnt(0)')
    srd(a, 4, 48, WS_BYTES)
    a('s_cmp_ge_u32 s22, 28\ns_cbranch_scc1 P_ln')
    a('s_mul_i32 s23, s22, 37\ns_lshr_b32 s23, s23, 8')
    a('s_mul_i32 s24, s23, 7\ns_sub_u32 s24, s22, s24')
    a('s_and_b32 s25, s23, 1\ns_lshl_b32 s26, s21, 1\ns_add_u32 s25, s25, s26')
    a('v_and_b32 v10, 15, v1\nv_lshrrev_b32 v11, 4, v1')
    a('v_lshlrev_b32 v2, 13, v10\nv_lshl_add_u32 v2, v11, 4, v2')
    a('s_lshl_b32 s26, s25, 9')
    a('s_lshl_b32 s27, s24, 19\ns_add_u32 s28, s27, s26')
    for mu in range(1, 4):
        a('s_add_u32 s%d, s28, 0x%x' % (28 + mu, mu * 16 * 8192))
    a('s_mul_i32 s32, s25, 0x%x' % MAT)
    a('s_mul_i32 s33, s20, 49\ns_add_u32 s33, s33, s24\ns_lshl_b32 s33, s33, 11\ns_add_u32 s32, s32, s33')
    a('v_lshlrev_b32 v12, 4, v1')
    a('s_cmp_ge_u32 s23, 2\ns_cbranch_scc1 P_bjob')
    ACC = lambda mu, t: 16 + (mu * 7 + t) * 4
    def epilogue(scale):
        a('s_nop 7')
        for t in range(7):
            o = 128 + 8 * t
            if scale:
                for mu in range(4):
                    for r in range(4):
                        a('v_mul_f32 v%d, s34, v%d' % (ACC(mu, t) + r, ACC(mu, t) + r))
            for aa in range(2):
                for q in range(4):
                    mu = aa + 2 * (q & 1); r0 = 2 * (q >> 1)
                    a('v_cvt_pk_bf16_f32 v%d, v%d, v%d' % (o + 4 * aa + q, ACC(mu, t) + r0, ACC(mu, t) + r0 + 1))
            a('buffer_store_dwordx4 %s, v12, s[4:7], s32 offen' % vr(o, 4))
            a('buffer_store_dwordx4 %s, v12, s[4:7], s32 offen offset:1024' % vr(o + 4, 4))
            if t < 6:
                a('s_add_u32 s32, s32, %d' % (7 * 2048))
        a('s_endpgm')
    srd(a, 8, 40, WSZ)
    srd(a, 12, 42, WSZ)
    a('s_mov_b32 s34, 0x%x' % f2u(1.4426950408889634 / 16.0))
    a('v_lshrrev_b32 v13, 2, v10')
    a('v_and_b32 v14, 1, v10\nv_bfe_u32 v15, v10, 1, 1\nv_lshl_add_u32 v14, v15, 2, v14')
    a('v_lshl_add_u32 v15, v13, 4, v14')
    a('v_lshl_add_u32 v14, v13, 3, v14')
    a('s_lshl_b32 s35, s20, 6')
    for t in range(4):
        a('s_add_u32 s27, s35, %d' % (8 * (t // 2) + 2 * (t % 2)))
        a('v_add_u32 v%d, s27, v15' % (3 + t))
    a('s_lshl_b32 s35, s20, 5')
    for t in (4, 5):
        a('s_add_u32 s27, s35, %d' % (256 + 2 * (t % 2)))
        a('v_add_u32 v%d, s27, v14' % (3 + t))
    a('s_lshr_b32 s35, s20, 1\ns_lshl_b32 s35, s35, 5\ns_and_b32 s27, s20, 1\ns_lshl_b32 s27, s27, 1\ns_add_u32 s27, s27, s35\ns_add_u32 s27, s27, 384')
    a('v_add_u32 v9, s27, v14')
    for t in range(7):
        a('v_lshlrev_b32 v%d, 13, v%d\nv_lshl_add_u32 v%d, v11, 4, v%d' % (3 + t, 3 + t, 3 + t, 3 + t))
    quad = lambda ks, i: 128 + 4 * (ks * 11 + i)
    def loadsA(ks):
        for mu in range(4):
            a('buffer_load_dwordx4 %s, v2, s[8:11], s%d offen offset:%d' % (R(quad(ks, mu), 4), 28 + mu, 64 * ks))
        for t in range(7):
            a('buffer_load_dwordx4 %s, v%d, s[12:15], s26 offen offset:%d' % (R(quad(ks, 4 + t), 4), 3 + t, 64 * ks))
    for ks in range(5): loadsA(ks)
    for ks in range(8):
        a('s_waitcnt vmcnt(%d)' % (11 * (min(8, 5 + ks) - ks - 1)))
        for mu in range(4):
            for t in range(7):
                a('v_mfma_f32_16x16x32_bf16 %s, %s, %s, %s' % (vr(ACC(mu, t), 4), R(quad(ks, mu), 4), R(quad(ks, 4 + t), 4), '0' if ks == 0 else vr(ACC(mu, t), 4)))
        if ks + 5 < 8: loadsA(ks + 5)
    epilogue(True)
    a.label('P_bjob')
    srd(a, 8, 44, WSZ)
    srd(a, 12, 46, WSZ)
    a('s_add_u32 s32, s32, 0x%x' % BFR)
    a('s_movk_i32 s27, 4682')
    for i in range(7):
        a('v_add_u32 v13, %d, v1' % (64 * i))
        a('v_mul_u32_u24 v14, s27, v13\nv_lshrrev_b32 v14, 16, v14')
        a('v_mul_u32_u24 v15, 14, v14\nv_sub_u32 v15, v13, v15')
        a('v_mul_u32_u24 v14, 0x380, v14\nv_lshl_add_u32 v%d, v15, 4, v14' % (3 + i))
    a('s_mul_i32 s26, s25, 229376\ns_mul_i32 s27, s20, 224\ns_add_u32 s26, s26, s27')
    a('s_mul_i32 s35, s20, 35840')
    a('v_bfe_u32 v13, v1, 2, 2\nv_lshl_add_u32 v13, v11, 3, v13\nv_mul_u32_u24 v13, 224, v13')
    a('v_and_b32 v14, 3, v1\nv_lshl_add_u32 v13, v14, 3, v13\nv_add_u32 v13, s35, v13')
    def loadsB(ks):
        slot = ks % 5
        for i in range(7):
            a('s_add_u32 m0, s35, %d' % (slot * 7168 + i * 1024))
            a('s_nop 0')
            a('buffer_load_dwordx4 v%d, s[12:15], s26 offen lds' % (3 + i))
        a('s_add_u32 s26, s26, %d' % (32 * 896))
        for mu in range(4):
            a('buffer_load_dwordx4 %s, v2, s[8:11], s%d offen offset:%d' % (ar(4 * (ks * 4 + mu), 4), 28 + mu, 64 * ks))
    for ks in range(5): loadsB(ks)
    for ks in range(8):
        a('s_waitcnt vmcnt(%d)' % (11 * (min(8, 5 + ks) - ks - 1)))
        bo = 128 + 28 * (ks % 2)
        for t in range(7):
            off = (ks % 5) * 7168 + 32 * t
            a('ds_read_b64_tr_b16 %s, v13 offset:%d' % (vr(bo + 4 * t, 2), off))
            a('ds_read_b64_tr_b16 %s, v13 offset:%d' % (vr(bo + 4 * t + 2, 2), off + 896))
        for t in range(7):
            a('s_waitcnt lgkmcnt(%d)' % (12 - 2 * t))
            for mu in range(4):
                a('v_mfma_f32_16x16x32_bf16 %s, %s, %s, %s' % (vr(ACC(mu, t), 4), ar(4 * (ks * 4 + mu), 4), vr(bo + 4 * t, 4), '0' if ks == 0 else vr(ACC(mu, t), 4)))
        if ks + 5 < 8: loadsB(ks + 5)
    epilogue(False)
    a.label('P_ln')
    srd(a, 8, 36, XSZ)
    a('s_lshl_b32 s23, s21, 2\ns_add_u32 s23, s23, s22\ns_sub_u32 s23, s23, 28')
    a('s_lshl_b32 s24, s23, 2\ns_add_u32 s24, s24, s20')
    a('v_and_b32 v10, 15, v1\nv_lshrrev_b32 v11, 4, v1')
    a('v_mul_u32_u24 v2, 0x380, v10\nv_lshl_add_u32 v2, v11, 3, v2')
    a('s_mul_i32 s25, s24, %d' % (16 * 896))
    for i in range(28):
        a('buffer_load_dwordx2 %s, v2, s[8:11], s25 offen offset:%d' % (vr(16 + 2 * i, 2), 32 * i))
    a('s_lshl_b32 s26, s23, 12\nv_lshlrev_b32 v3, 4, v0\nv_add_u32 v3, s26, v3')
    for r in range(4):
        a('v_mov_b32 v%d, -1\nv_mov_b32 v%d, 0' % (4 + r, 12 + r))
    for (base, size) in ((MEMC + 7168, MEMSZ - 7168), (MEMX + 7168, MEMSZ - 7168), (PC, PCSZ)):
        srd(a, 12, 48, size, base)
        for p in range((size + 131071) // 131072):
            a('s_mov_b32 s26, 0x%x' % (p * 131072))
            a('buffer_store_dwordx4 v[4:7], v3, s[12:15], s26 offen')
    srd(a, 12, 48, FLGSZ, FLG)
    a('buffer_store_dwordx4 v[12:15], v3, s[12:15], 0 offen')
    nfill = 4 + 4 + 5 + 1
    a('s_waitcnt vmcnt(%d)' % nfill)
    X = lambda i: 80 + i
    for i in range(56):
        a('v_lshlrev_b32 v%d, 16, v%d' % (X(2 * i), 16 + i))
        a('v_and_b32 v%d, 0xffff0000, v%d' % (X(2 * i + 1), 16 + i))
    def rowsum(dst):
        a('v_mov_b32 v73, v%d\ns_nop 1\nv_permlane16_swap_b32 v73, v%d\nv_add_f32 v%d, v%d, v73' % (dst, dst, dst, dst))
        a('v_mov_b32 v73, v%d\ns_nop 1\nv_permlane32_swap_b32 v73, v%d\nv_add_f32 v%d, v%d, v73' % (dst, dst, dst, dst))
    def bfround(r):
        a('v_cvt_pk_bf16_f32 v%d, v%d, v%d\nv_lshlrev_b32 v%d, 16, v%d' % (r, r, r, r, r))
    for k in range(4):
        a('v_add_f32 v%d, v%d, v%d' % (74 + k, X(k), X(k + 4)))
    for i in range(8, 112):
        a('v_add_f32 v%d, v%d, v%d' % (74 + i % 4, 74 + i % 4, X(i)))
    a('v_add_f32 v74, v74, v75\nv_add_f32 v76, v76, v77\nv_add_f32 v72, v74, v76')
    rowsum(72)
    a('v_mul_f32 v72, 0x%x, v72' % f2u(1.0 / 448))
    for k in range(4):
        a('v_mov_b32 v%d, 0' % (74 + k))
    for i in range(112):
        a('v_sub_f32 v%d, v%d, v72\nv_fmac_f32 v%d, v%d, v%d' % (78 + i % 2, X(i), 74 + i % 4, 78 + i % 2, 78 + i % 2))
    a('v_add_f32 v74, v74, v75\nv_add_f32 v76, v76, v77\nv_add_f32 v74, v74, v76')
    rowsum(74)
    a('v_mul_f32 v74, 0x%x, v74' % f2u(1.0 / 448))
    bfround(74)
    a('v_add_f32 v74, 0x%x, v74' % f2u(1e-5))
    bfround(74)
    a('v_sqrt_f32 v74, v74\ns_nop 0')
    bfround(74)
    a('v_rcp_f32 v74, v74')
    bfround(72)
    for i in range(56):
        x0, x1 = X(2 * i), X(2 * i + 1)
        a('v_sub_f32 v%d, v%d, v72\nv_sub_f32 v%d, v%d, v72' % (x0, x0, x1, x1))
        a('v_cvt_pk_bf16_f32 v78, v%d, v%d' % (x0, x1))
        a('v_lshlrev_b32 v%d, 16, v78\nv_and_b32 v%d, 0xffff0000, v78' % (x0, x1))
        a('v_mul_f32 v%d, v74, v%d\nv_mul_f32 v%d, v74, v%d' % (x0, x0, x1, x1))
        a('v_cvt_pk_bf16_f32 v%d, v%d, v%d' % (16 + i, x0, x1))
    a('s_add_u32 s26, s25, 0x%x' % XN)
    for i in range(28):
        a('buffer_store_dwordx2 %s, v2, s[4:7], s26 offen offset:%d' % (vr(16 + 2 * i, 2), 32 * i))
    for ks in range(14):
        kk, aa = ks // 2, ks % 2
        for q in range(4):
            mu = aa + 2 * (q & 1)
            a('v_mov_b32 v%d, v%d' % (192 + 4 * ks + q, 16 + 2 * (4 * kk + mu) + (q >> 1)))
    a('v_lshlrev_b32 v12, 4, v1')
    a('s_mul_i32 s26, s24, 14336\ns_add_u32 s26, s26, 0x%x' % XP)
    for ks in range(14):
        if ks and ks % 4 == 0:
            a('s_add_u32 s26, s26, 4096')
        a('buffer_store_dwordx4 %s, v12, s[4:7], s26 offen offset:%d' % (vr(192 + 4 * ks, 4), (ks % 4) * 1024))
    a('s_cmp_lg_u32 s24, 0\ns_cbranch_scc1 P_end')
    srd(a, 8, 38, 7168)
    a('v_and_b32 v13, 7, v1\nv_mul_u32_u24 v13, 0x380, v13\nv_bfe_u32 v14, v1, 3, 1\nv_lshl_add_u32 v13, v14, 6, v13\nv_lshl_add_u32 v13, v11, 4, v13')
    for kk in range(7):
        a('buffer_load_dwordx4 %s, v13, s[8:11], 0 offen offset:%d' % (vr(80 + 4 * kk, 4), 128 * kk))
    a('s_waitcnt vmcnt(0)')
    for i in range(28):
        a('v_min_u32 v%d, -2, v%d' % (80 + i, 80 + i))
    for base in (MEMC, MEMX):
        for kk in range(7):
            a('s_mov_b32 s26, 0x%x' % (base + kk * 1024))
            a('buffer_store_dwordx4 %s, v12, s[4:7], s26 offen' % vr(80 + 4 * kk, 4))
    a.label('P_end')
    a('s_endpgm')
```

```python
from asm import *
from layout import *
from prep import srd, f2u

LOG2E = 1.4426950408889634
ACC = lambda t, mt: 4 * (2 * t + mt)
XS = lambda b, mt: 56 + 8 * b + 4 * mt
VL, VX = 104, 105

def mfma(a, d, x, y, c=None):
    a('v_mfma_f32_16x16x32_bf16 %s, %s, %s, %s' % (R(d, 4), R(x, 4), R(y, 4), '0' if c is None else R(c, 4)))

def idx14(a, dst0, n, rowbytes):
    a('s_movk_i32 s27, 4682')
    for i in range(n):
        a('v_add_u32 v2, %d, v1' % (64 * i))
        a('v_mul_u32_u24 v3, s27, v2\nv_lshrrev_b32 v3, 16, v3')
        a('v_mul_u32_u24 v4, 14, v3\nv_sub_u32 v4, v2, v4')
        a('v_mul_u32_u24 v3, %d, v3\nv_lshl_add_u32 v%d, v4, 4, v3' % (rowbytes, dst0 + i))

def dma_x(a):
    a('s_mov_b32 m0, s28\ns_add_u32 s63, s27, 4096')
    for i in range(4):
        a('buffer_load_dwordx4 v%d, s[4:7], s27 offen offset:%d lds' % (VL, i * 1024))
    a('s_add_u32 m0, s28, 4096\ns_nop 0')
    for i in range(3):
        a('buffer_load_dwordx4 v%d, s[4:7], s63 offen offset:%d lds' % (VL, i * 1024))

def gemm_setup(a, flag0):
    a('s_mul_i32 s27, s24, 28672\ns_mul_i32 s28, s20, 7168\ns_add_u32 s27, s27, s28\ns_add_u32 s27, s27, 0x%x' % XP)
    dma_x(a)
    a('v_mov_b32 v%d, v%d' % (VX, VL))
    a('s_lshl_b32 s30, s24, 6\ns_add_u32 s30, s30, s%d\ns_mov_b32 s31, 0x%x' % (flag0, FLG_M))

def gemm_loop(c, name, step, wA, epilogue):
    from mainker import WREG
    a = c.a
    a.label(name + '_top')
    a('s_waitcnt vmcnt(0)\ns_barrier')
    a('s_cmp_lg_u32 s20, 0\ns_cbranch_scc1 %s_nf' % name)
    a('v_mov_b32 v56, 1\ns_mov_b64 exec, 1\nbuffer_store_dword v56, off, s[4:7], s31 sc1\ns_mov_b64 exec, -1')
    a.label(name + '_nf')
    a('s_cmp_ge_u32 s24, 64\ns_cbranch_scc1 M_exit')
    a('s_add_u32 s27, s27, %d\ns_xor_b32 s28, s28, 32768' % (28672 * step))
    a('s_cmp_ge_u32 s24, %d\ns_cbranch_scc1 %s_nd' % (64 - step, name))
    dma_x(a)
    a.label(name + '_nd')
    def rd(ks):
        for mt in range(2):
            a('ds_read_b128 %s, v%d offset:%d' % (vr(XS(ks % 2, mt), 4), VX, (mt * 14 + ks) * 1024))
    rd(0)
    for ks in range(14):
        if ks < 13: rd(ks + 1)
        a('s_waitcnt lgkmcnt(%d)' % (2 if ks < 13 else 0))
        for t in range(7):
            for mt in range(2):
                wr = WREG(t * 7 + ks // 2) + 4 * (ks % 2)
                x = XS(ks % 2, mt)
                mfma(a, ACC(t, mt), wr if wA else x, x if wA else wr, None if ks == 0 else ACC(t, mt))
    a('v_xor_b32 v%d, 32768, v%d\ns_nop 6' % (VX, VX))
    epilogue()
    a('s_mov_b32 s31, s30\ns_add_u32 s30, s30, %d\ns_add_u32 s24, s24, %d' % (64 * step, step))
    a('s_branch %s_top' % name)

def gen_RU(c):
    from mainker import WREG, load_weights, cvt
    a = c.a
    a.label('RU_role')
    a('s_lshr_b32 s25, s22, 2\ns_and_b32 s24, s22, 3')
    a('s_lshl_b32 s26, s25, 2\ns_add_u32 s26, s26, 0x%x' % FLG_U)
    gemm_setup(a, 26)
    a('s_mul_i32 s26, s25, 0x%x\ns_mul_i32 s29, s20, %d\ns_add_u32 s26, s26, s29\ns_add_u32 s26, s26, 0x%x' % (MAT, 49 * 2048, BFR))
    load_weights(a, [(WREG(b), b * 2048) for b in range(49)], 26, VL)
    a('s_mul_i32 s29, s24, 0x%x\ns_mul_i32 s32, s25, 28672\ns_add_u32 s29, s29, s32\ns_mul_i32 s32, s20, 7168\ns_add_u32 s29, s29, s32\ns_add_u32 s29, s29, 0x%x' % (USEG, UB))
    def epi():
        a('s_add_u32 s32, s29, 4096')
        for t in range(7):
            o = 72 + 4 * t
            for q in range(4):
                s = ACC(t, q // 2) + 2 * (q % 2)
                cvt(a, o + q, s, s + 1)
            a('buffer_store_dwordx4 %s, v%d, s[4:7], s%d offen offset:%d sc1' % (vr(o, 4), VL, 29 if t < 4 else 32, (t % 4) * 1024))
        a('s_add_u32 s29, s29, 0x%x' % (4 * USEG))
    gemm_loop(c, 'RU', 4, False, epi)

def gen_RH(c):
    from mainker import WREG, cvt
    a = c.a
    a.label('RH_role')
    a('s_sub_u32 s22, s22, 128\ns_lshr_b32 s25, s22, 3\ns_and_b32 s24, s22, 7')
    srd(a, 8, 40, 448 * 1792 * 2)
    idx14(a, 6, 14, 3584)
    a('s_mul_i32 s26, s25, 896\ns_mul_i32 s27, s20, 224\ns_add_u32 s26, s26, s27')
    a('s_mul_i32 s35, s20, 28672')
    a('v_lshrrev_b32 v2, 4, v1\nv_bfe_u32 v3, v1, 2, 1\nv_lshl_add_u32 v2, v2, 2, v3\nv_bfe_u32 v3, v1, 3, 1\nv_lshl_add_u32 v2, v3, 5, v2')
    a('v_mul_u32_u24 v2, 224, v2\nv_and_b32 v3, 3, v1\nv_lshl_add_u32 v2, v3, 3, v2\nv_add_u32 v5, s35, v2')
    def ld(kk):
        for i in range(14):
            a('s_add_u32 m0, s35, %d\ns_nop 0' % ((kk % 2) * 14336 + i * 1024))
            a('buffer_load_dwordx4 v%d, s[8:11], s26 offen lds' % (6 + i))
        a('s_add_u32 s26, s26, %d' % (64 * 3584))
    ld(0); ld(1)
    for kk in range(7):
        a('s_waitcnt vmcnt(%d)' % (14 if kk < 6 else 0))
        for t in range(7):
            for q in range(4):
                a('ds_read_b64_tr_b16 %s, v5 offset:%d' % (R(WREG(t * 7 + kk) + 2 * q, 2), (kk % 2) * 14336 + (16 * (q // 2) + 2 * (q % 2)) * 224 + 32 * t))
            if t % 2 == 1: a('s_waitcnt lgkmcnt(4)')
        a('s_waitcnt lgkmcnt(0)')
        if kk + 2 < 7: ld(kk + 2)
    a('s_barrier')
    a('s_lshl_b32 s26, s25, 2\ns_add_u32 s26, s26, 0x%x' % FLG_H)
    gemm_setup(a, 26)
    a('s_mul_i32 s29, s24, 0x%x\ns_mul_i32 s32, s25, 28672\ns_add_u32 s29, s29, s32\ns_add_u32 s29, s29, 0x%x' % (HSEG, HB))
    a('s_mul_i32 s33, s20, 3072')
    a('s_lshr_b32 s34, s20, 1\ns_lshl_b32 s34, s34, 10\ns_and_b32 s32, s20, 1\ns_lshl_b32 s32, s32, 3\ns_add_u32 s34, s34, s32\ns_add_u32 s34, s34, 12288')
    a('s_mov_b32 s35, 0x%x' % f2u(-LOG2E))
    def epi():
        for mt in range(2):
            a('s_add_u32 s32, s29, s33\ns_add_u32 s26, s29, s34')
            for t in range(7):
                s = ACC(t, mt); tm = 56 + 4 * (t % 2)
                for r in range(4): a('v_mul_f32 v%d, s35, v%d' % (tm + r, s + r))
                for r in range(4): a('v_exp_f32 v%d, v%d' % (tm + r, tm + r))
                for r in range(4): a('v_add_f32 v%d, 1.0, v%d' % (tm + r, tm + r))
                for r in range(4): a('v_rcp_f32 v%d, v%d' % (tm + r, tm + r))
                for r in range(4): a('v_mul_f32 v%d, v%d, v%d' % (s + r, s + r, tm + r))
                o = 72 + 16 * mt + 2 * t
                cvt(a, o, s, s + 1); cvt(a, o + 1, s + 2, s + 3)
                if t % 2 == 1:
                    a('buffer_store_dwordx4 %s, v%d, s[4:7], s32 offen offset:%d sc1' % (vr(o - 2, 4), VL, (t // 2) * 1024))
                elif t == 6:
                    a('buffer_store_dwordx2 %s, v%d, s[4:7], s26 offen sc1' % (vr(o, 2), VL))
            a('s_add_u32 s29, s29, 0x%x' % (14336 if mt == 0 else 8 * HSEG - 14336))
    gemm_loop(c, 'RH', 8, True, epi)

def gen_RT(c):
    from mainker import WREG, load_weights, cvt, NEGBIG, OOB
    a = c.a
    VKX, VKM, VPM, VNG, VSB, TMP = 106, 109, 112, 113, 114, 115
    TP = lambda mt, sg: 72 + 16 * mt + 4 * sg
    KX = lambda tau, sg: 16 * tau + 4 * sg
    KM = lambda sg: 32 + 4 * sg
    SA = lambda tile, mt: 48 + 8 * tile + 4 * mt
    SB = 65536
    a.label('RT_role')
    a('s_sub_u32 s22, s22, 64\ns_lshr_b32 s25, s22, 2\ns_and_b32 s24, s22, 3')
    a('s_lshl_b32 s26, s25, 2\ns_add_u32 s26, s26, 0x%x' % FLG_P)
    gemm_setup(a, 26)
    a('s_mul_i32 s26, s25, 0x%x\ns_mul_i32 s29, s20, %d\ns_add_u32 s26, s26, s29\ns_add_u32 s26, s26, 0x%x' % (MAT, 49 * 2048, AFR))
    load_weights(a, [(WREG(b), b * 2048) for b in range(49)], 26, VL)
    a('v_and_b32 v2, 15, v1\nv_lshrrev_b32 v3, 4, v1\nv_and_b32 v4, 7, v1')
    a('v_mul_u32_u24 v5, 0x380, v2\nv_lshl_add_u32 v6, v3, 5, v5\nv_lshl_add_u32 v5, v3, 4, v5')
    a('s_lshl_b32 s32, s20, 7\nv_add_u32 v%d, s32, v6' % VKX)
    a('s_lshl_b32 s32, s20, 6\ns_add_u32 s32, s32, 512\nv_add_u32 v%d, s32, v5' % (VKX + 1))
    a('s_lshr_b32 s33, s20, 1\ns_lshl_b32 s32, s33, 6\ns_add_u32 s32, s32, 768\nv_add_u32 v%d, s32, v5' % (VKX + 2))
    a('v_lshlrev_b32 v5, 4, v4\nv_and_b32 v6, 1, v3\nv_lshl_add_u32 v6, v6, 9, v5\nv_lshrrev_b32 v7, 1, v3\nv_lshl_add_u32 v6, v7, 7, v6')
    a('s_lshl_b32 s32, s20, 10\nv_add_u32 v%d, s32, v6' % VKM)
    a('v_lshl_add_u32 v5, v3, 8, v5')
    a('s_and_b32 s34, s20, 1\ns_lshl_b32 s32, s33, 10\ns_lshl_b32 s35, s34, 7\ns_add_u32 s32, s32, s35\ns_add_u32 s32, s32, 4096\nv_add_u32 v%d, s32, v5' % (VKM + 1))
    a('s_lshl_b32 s32, s33, 7\ns_add_u32 s32, s32, 6144\nv_add_u32 v%d, s32, v5' % (VKM + 2))
    a('s_sub_u32 s50, s34, 1\ns_not_b32 s51, s50')
    a('s_lshl_b32 s32, s20, 4\nv_lshlrev_b32 v5, 2, v3\nv_sub_u32 v5, v2, v5\nv_add_u32 v%d, s32, v5' % VNG)
    a('s_lshr_b32 s32, s25, 2\ns_lshl_b32 s32, s32, 1\ns_add_u32 s32, s32, s20\ns_lshl_b32 s32, s32, 10\ns_add_u32 s32, s32, 32768')
    a('s_and_b32 s33, s25, 1\ns_lshl_b32 s33, s33, 9\ns_add_u32 s32, s32, s33\ns_bfe_u32 s33, s25, 0x10001\ns_lshl_b32 s33, s33, 3\ns_add_u32 s32, s32, s33')
    a('v_add_u32 v5, s32, v%d\nv_mov_b32 v6, 0x%x\nv_cmp_gt_u32 s[52:53], 32, v1\ns_nop 1\nv_cndmask_b32 v%d, v6, v5, s[52:53]' % (VL, OOB, VPM))
    a('s_mul_i32 s32, s20, 6144\ns_add_u32 s32, s32, %d\nv_add_u32 v%d, s32, v%d' % (SB, VSB, VL))
    a('s_lshl_b32 s32, s20, 10\ns_add_u32 s32, s32, %d\nv_add_u32 v116, s32, v%d' % (SB, VL))
    VSR = 116
    a('s_mul_i32 s29, s24, 28672\ns_add_u32 s29, s29, 0x%x' % XN)
    a('s_mul_i32 s33, s24, 7168\ns_add_u32 s33, s33, 0x%x' % MEMX)
    a('s_mul_i32 s34, s24, 40960\ns_add_u32 s34, s34, 0x%x' % PX)
    a('s_lshl_b32 s54, s25, 1\ns_add_u32 s54, s54, s20\ns_lshl_b32 s54, s54, 10')
    a('s_mov_b32 s55, 0x%x' % NEGBIG)
    def epi():
        for mt in range(2):
            for sg in range(3):
                for q in range(4):
                    s = ACC(2 * sg + q % 2, mt) + 2 * (q // 2)
                    cvt(a, TP(mt, sg) + q, s, s + 1)
            for hf in range(2):
                s = ACC(6, mt) + 2 * hf; o = TP(mt, 3) + 2 * hf
                cvt(a, o, s, s + 1)
                a('v_and_b32 v%d, s51, v%d\nv_and_b32 v%d, s50, v%d' % (o + 1, o, o, o))
        a('s_add_u32 s32, s29, %d' % (16 * 896))
        for tau in range(2):
            for sg in range(4):
                a('buffer_load_dwordx4 %s, v%d, s[4:7], s%d offen offset:%d' % (vr(KX(tau, sg), 4), VKX + max(0, sg - 1), 32 if tau else 29, 16 if sg == 1 else 0))
        for tau in range(2):
            for sg in range(4):
                a('s_waitcnt vmcnt(%d)' % (7 - 4 * tau - sg))
                for mt in range(2):
                    if tau <= mt:
                        mfma(a, SA(tau, mt), KX(tau, sg), TP(mt, sg), None if sg == 0 else SA(tau, mt))
        a('s_nop 4')
        for (tau, mt) in ((0, 0), (0, 1), (1, 1)):
            if tau == 1: a('s_nop 2')
            a('ds_write_b128 v%d, %s offset:%d' % (VSB, vr(SA(tau, mt), 4), (tau * 2 + mt) * 1024))
        a('s_waitcnt lgkmcnt(0)\ns_barrier')
        a('s_cmp_ge_u32 s20, 2\ns_cbranch_scc1 RT_p1')
        for tau in range(2):
            for p in range(4):
                a('ds_read_b128 %s, v%d offset:%d' % (vr(16 * tau + 4 * p, 4), VSR, p * 6144 + tau * 2048))
        for tau in range(2):
            a('s_waitcnt lgkmcnt(%d)' % (4 - 4 * tau))
            for r in range(4):
                b = 16 * tau + r
                a('v_add_f32 v%d, v%d, v%d\nv_add_f32 v%d, v%d, v%d\nv_add_f32 v%d, v%d, v%d' % (b, b, b + 4, b + 8, b + 8, b + 12, b, b, b + 8))
                a('v_cmp_le_i32 vcc, %d, v%d\nv_mov_b32 v%d, s55\ns_nop 0\nv_cndmask_b32 v%d, v%d, v%d, vcc' % (16 * tau + r, VNG, b + 4, 8 * tau + r, b + 4, b))
        a('v_max3_f32 v4, v0, v1, v2\nv_max3_f32 v4, v4, v3, v8\nv_max3_f32 v4, v4, v9, v10\nv_max_f32 v4, v4, v11')
        a.label('RT_p1')
        l = c.spin_head('RTm0')
        a('buffer_load_dword v%d, off, s[4:7], s33 sc1\ns_waitcnt vmcnt(0)\nv_cmp_eq_u32 vcc, -1, v%d\ns_cbranch_vccnz %s' % (TMP, TMP, l))
        l = c.spin_head('RTm1')
        for sg in range(4):
            a('buffer_load_dwordx4 %s, v%d, s[4:7], s33 offen offset:%d sc1' % (vr(KM(sg), 4), VKM + max(0, sg - 1), 256 if sg == 1 else 0))
        a('s_waitcnt vmcnt(0)')
        c.check_poison(list(range(KM(0), KM(0) + 16)), TMP)
        a('s_cbranch_vccnz %s' % l)
        for sg in range(4):
            for mt in range(2):
                mfma(a, SA(2, mt), KM(sg), TP(mt, sg), None if sg == 0 else SA(2, mt))
        a('s_nop 4')
        a('ds_write_b128 v%d, %s offset:4096\ns_nop 2\nds_write_b128 v%d, %s offset:5120' % (VSB, vr(SA(2, 0), 4), VSB, vr(SA(2, 1), 4)))
        a('s_waitcnt lgkmcnt(0)\ns_barrier')
        a('s_cmp_ge_u32 s20, 2\ns_cbranch_scc1 RT_p2')
        for p in range(4):
            a('ds_read_b128 %s, v%d offset:%d' % (vr(16 + 4 * p, 4), VSR, p * 6144 + 4096))
        a('v_mov_b32 v5, 0xff800000\ns_waitcnt lgkmcnt(0)')
        for r in range(4):
            b = 16 + r
            a('v_add_f32 v%d, v%d, v%d\nv_add_f32 v%d, v%d, v%d\nv_add_f32 v%d, v%d, v%d' % (b, b, b + 4, b + 8, b + 8, b + 12, b, b, b + 8))
            a('v_cndmask_b32 v%d, v5, v%d, s[52:53]' % (12 + r, b))
        a('v_max3_f32 v4, v4, v12, v13\nv_max3_f32 v4, v4, v14, v15')
        def allg(op, r, tmp):
            for sw in ('16', '32'):
                a('v_mov_b32 v%d, v%d\ns_nop 1\nv_permlane%s_swap_b32 v%d, v%d\n%s v%d, v%d, v%d' % (tmp, r, sw, tmp, r, op, r, r, tmp))
        allg('v_max_f32', 4, 5)
        regs = [0, 1, 2, 3, 8, 9, 10, 11, 12, 13, 14, 15]
        for r in regs: a('v_sub_f32 v%d, v%d, v4' % (r, r))
        for r in regs: a('v_exp_f32 v%d, v%d' % (r, r))
        a('v_add_f32 v4, v0, v1\nv_add_f32 v5, v2, v3\nv_add_f32 v6, v8, v9\nv_add_f32 v7, v10, v11\nv_add_f32 v16, v12, v13\nv_add_f32 v17, v14, v15')
        a('v_add_f32 v4, v4, v5\nv_add_f32 v6, v6, v7\nv_add_f32 v16, v16, v17\nv_add_f32 v4, v4, v6\nv_add_f32 v4, v4, v16')
        allg('v_add_f32', 4, 5)
        a('v_rcp_f32 v4, v4\ns_add_u32 s32, s34, s54')
        for r in regs: a('v_mul_f32 v%d, v%d, v4' % (r, r))
        for i in range(6): cvt(a, 16 + i, regs[2 * i], regs[2 * i + 1])
        a('buffer_store_dwordx4 v[16:19], v%d, s[4:7], s32 offen sc1' % VL)
        a('buffer_store_dwordx2 v[20:21], v%d, s[4:7], s34 offen sc1' % VPM)
        a.label('RT_p2')
        a('s_add_u32 s29, s29, %d\ns_add_u32 s33, s33, %d\ns_add_u32 s34, s34, %d' % (4 * 28672, 4 * 7168, 4 * PXSEG))
    gemm_loop(c, 'RT', 4, True, epi)

def gen_W3(c):
    from mainker import cvt
    a = c.a
    D = lambda ct, mt: 4 * (2 * ct + mt)
    HF = lambda ks, mt: 32 + 4 * (2 * ks + mt)
    UF = lambda hh, ct: 144 + 4 * (4 * hh + ct)
    PF = lambda hh, mt: 208 + 4 * (2 * hh + mt)
    VMF = lambda ct: 32 + 4 * ct
    PMF = lambda mt: 48 + 4 * mt
    XR, L16, VO, VRW, VRR, TMP = 240, 244, 245, 246, 247, 248
    W2 = lambda ks, ct: 256 + 4 * (4 * ks + ct)
    a.label('W3_role')
    a('s_sub_u32 s22, s22, 160\ns_cmp_ge_u32 s22, 63\ns_cbranch_scc1 M_exit')
    a('s_mul_i32 s24, s22, 37\ns_lshr_b32 s24, s24, 8\ns_mul_i32 s25, s24, 7\ns_sub_u32 s25, s22, s25')
    srd(a, 8, 42, 448 * 1792 * 2)
    srd(a, 12, 44, XSZ)
    srd(a, 52, 36, XSZ)
    a('v_lshlrev_b32 v%d, 4, v1' % L16)
    a('v_lshrrev_b32 v2, 3, v1\nv_mul_u32_u24 v2, 0x380, v2\nv_and_b32 v3, 7, v1\nv_lshl_add_u32 v6, v3, 4, v2')
    a('s_mul_i32 s26, s20, %d\ns_lshl_b32 s27, s25, 7\ns_add_u32 s26, s26, s27' % (448 * 896))
    a('s_mul_i32 s35, s20, 28672')
    a('v_lshrrev_b32 v2, 2, v1\nv_lshlrev_b32 v2, 7, v2\nv_and_b32 v3, 3, v1\nv_lshl_add_u32 v2, v3, 3, v2\nv_add_u32 v5, s35, v2')
    def ld(ch):
        for i in range(14):
            a('s_add_u32 m0, s35, %d\ns_nop 0' % ((ch % 2) * 14336 + i * 1024))
            a('buffer_load_dwordx4 v6, s[8:11], s26 offen lds')
            a('s_add_u32 s26, s26, %d' % (8 * 896))
    ld(0); ld(1)
    for ch in range(4):
        a('s_waitcnt vmcnt(%d)' % (14 if ch < 3 else 0))
        for tt in range(7):
            for ct in range(4):
                dst = W2(3 * ch + tt // 2, ct) + 2 * (tt % 2) if tt < 6 else W2(12 + ch // 2, ct) + 2 * (ch % 2)
                a('ds_read_b64_tr_b16 %s, v5 offset:%d' % (R(dst, 2), (ch % 2) * 14336 + 16 * tt * 128 + 32 * ct))
            if tt % 2 == 1: a('s_waitcnt lgkmcnt(4)')
        a('s_waitcnt lgkmcnt(0)')
        if ch + 2 < 4: ld(ch + 2)
    a('s_barrier')
    a('v_and_b32 v2, 15, v1\nv_lshrrev_b32 v3, 4, v1\nv_mul_u32_u24 v2, 0x380, v2\nv_lshl_add_u32 v2, v3, 3, v2')
    a('s_lshl_b32 s26, s25, 7\ns_lshl_b32 s27, s20, 5\ns_add_u32 s26, s26, s27\nv_add_u32 v%d, s26, v2' % VO)
    a('s_lshl_b32 s26, s20, 13\nv_add_u32 v%d, s26, v%d\ns_lshl_b32 s26, s20, 11\nv_add_u32 v%d, s26, v%d' % (VRW, L16, VRR, L16))
    a.label('W3_top')
    a('s_lshl_b32 s32, s24, 6\ns_lshl_b32 s33, s20, 2\ns_add_u32 s26, s32, s33\ns_add_u32 s26, s26, 0x%x' % FLG_H)
    a('s_lshl_b32 s33, s20, 4\ns_add_u32 s27, s32, s33\ns_add_u32 s28, s27, 0x%x\ns_add_u32 s27, s27, 0x%x' % (FLG_P, FLG_U))
    a('s_lshl_b32 s29, s24, 8\ns_lshl_b32 s33, s20, 6\ns_add_u32 s29, s29, s33\ns_lshl_b32 s33, s25, 3\ns_add_u32 s29, s29, s33\ns_add_u32 s29, s29, 0x%x' % FLG_V)
    a('s_mul_i32 s30, s24, 0x%x\ns_mul_i32 s33, s20, 28672\ns_add_u32 s30, s30, s33\ns_add_u32 s30, s30, 0x%x' % (HSEG, HB))
    a('s_mul_i32 s31, s24, 0x%x\ns_mul_i32 s33, s20, %d\ns_add_u32 s31, s31, s33\ns_lshl_b32 s33, s25, 12\ns_add_u32 s31, s31, s33\ns_add_u32 s31, s31, 0x%x' % (USEG, 4 * 28672, UB))
    a('s_mul_i32 s34, s24, 28672\ns_add_u32 s35, s34, 14336')
    c.wait_flags('W3h', 26, 1, TMP)
    c.wait_flags('W3u', 27, 4, TMP)
    for ks in range(14):
        for mt in range(2):
            a('s_add_u32 s63, s30, %d' % ((mt * 14 + ks) * 1024))
            a('buffer_load_dwordx4 %s, v%d, s[4:7], s63 offen sc1' % (vr(HF(ks, mt), 4), L16))
    for hh in range(4):
        for ct in range(4):
            a('buffer_load_dwordx4 %s, v%d, s[4:7], s31 offen offset:%d sc1' % (vr(UF(hh, ct), 4), L16, ct * 1024))
        a('s_add_u32 s31, s31, 28672')
    for mt in range(2):
        a('buffer_load_dwordx2 %s, v%d, s[52:55], s%d offen' % (vr(XR + 2 * mt, 2), VO, 34 + mt))
    for ks in range(14):
        a('s_waitcnt vmcnt(%d)' % (44 - 2 * ks))
        for ct in range(4):
            for mt in range(2):
                mfma(a, D(ct, mt), W2(ks, ct), HF(ks, mt), None if ks == 0 else D(ct, mt))
    a('s_mul_i32 s30, s24, %d\ns_lshl_b32 s33, s20, 13\ns_add_u32 s31, s30, s33\ns_add_u32 s31, s31, 0x%x' % (PXSEG, PX))
    a('s_lshl_b32 s33, s20, 11\ns_add_u32 s30, s30, s33\ns_add_u32 s30, s30, 0x%x' % (PX + 32768))
    a('s_mul_i32 s32, s24, 0x%x\ns_add_u32 s32, s32, s33\ns_lshl_b32 s33, s25, 14\ns_add_u32 s32, s32, s33\ns_add_u32 s32, s32, 0x%x' % (VMSEG, VM))
    a('s_add_u32 s33, s32, 8192\ns_add_u32 s63, s31, 4096')
    l = c.spin_head('W3pv')
    a('buffer_load_dwordx4 %s, off, s[4:7], s28 sc1\nbuffer_load_dwordx2 %s, off, s[4:7], s29 sc1\ns_waitcnt vmcnt(0)' % (vr(TMP, 4), vr(TMP + 4, 2)))
    a('v_min3_u32 v%d, v%d, v%d, v%d\nv_min3_u32 v%d, v%d, v%d, v%d\nv_min_u32 v%d, v%d, v%d' % (TMP, TMP, TMP + 1, TMP + 2, TMP, TMP, TMP + 3, TMP + 4, TMP, TMP, TMP + 5))
    a('v_cmp_eq_u32 vcc, 0, v%d\ns_cbranch_vccnz %s' % (TMP, l))
    for hh in range(4):
        for mt in range(2):
            a('buffer_load_dwordx4 %s, v%d, s[4:7], s%d offen offset:%d sc1' % (vr(PF(hh, mt), 4), L16, 31 if hh < 2 else 63, ((hh % 2) * 2 + mt) * 1024))
    for mt in range(2):
        a('buffer_load_dwordx4 %s, v%d, s[4:7], s30 offen offset:%d sc1' % (vr(PMF(mt), 4), L16, mt * 1024))
    for ct in range(4):
        a('buffer_load_dwordx4 %s, v%d, s[4:7], s%d offen offset:%d sc1' % (vr(VMF(ct), 4), L16, 32 + ct // 2, (ct % 2) * 1024))
    for hh in range(4):
        a('s_waitcnt vmcnt(%d)' % (12 - 2 * hh))
        for ct in range(4):
            for mt in range(2):
                mfma(a, D(ct, mt), UF(hh, ct), PF(hh, mt), D(ct, mt))
    for ct in range(4):
        a('s_waitcnt vmcnt(%d)' % (3 - ct))
        for mt in range(2):
            mfma(a, D(ct, mt), VMF(ct), PMF(mt), D(ct, mt))
    a('s_barrier')
    for ct in range(4):
        for mt in range(2):
            if ct == 3: a('s_nop 1')
            a('ds_write_b128 v%d, %s offset:%d' % (VRW, vr(D(ct, mt), 4), (2 * ct + mt) * 1024))
    a('s_waitcnt lgkmcnt(0)\ns_barrier')
    for mt in range(2):
        for p in range(4):
            a('ds_read_b128 %s, v%d offset:%d' % (vr(16 * mt + 4 * p, 4), VRR, p * 8192 + mt * 1024))
    for mt in range(2):
        b = 16 * mt
        for q in range(2):
            a('v_lshlrev_b32 v%d, 16, v%d\nv_and_b32 v%d, 0xffff0000, v%d' % (32 + 2 * q, XR + 2 * mt + q, 33 + 2 * q, XR + 2 * mt + q))
        a('s_waitcnt lgkmcnt(%d)' % (4 - 4 * mt))
        for r in range(4):
            a('v_add_f32 v%d, v%d, v%d\nv_add_f32 v%d, v%d, v%d\nv_add_f32 v%d, v%d, v%d\nv_add_f32 v%d, v%d, v%d' % (
                b + r, b + r, b + 4 + r, b + 8 + r, b + 8 + r, b + 12 + r, b + r, b + r, 32 + r, b + r, b + r, b + 8 + r))
        cvt(a, 36 + 2 * mt, b, b + 1); cvt(a, 37 + 2 * mt, b + 2, b + 3)
        a('buffer_store_dwordx2 %s, v%d, s[12:15], s%d offen' % (vr(36 + 2 * mt, 2), VO, 34 + mt))
    a('s_add_u32 s24, s24, 9\ns_cmp_lt_u32 s24, 64\ns_cbranch_scc1 W3_top')
    a('s_endpgm')

def gen_workers(c):
    a = c.a
    a.label('W_roles')
    a('s_sub_u32 s25, s21, 1\ns_lshl_b32 s25, s25, 5\ns_add_u32 s22, s22, s25')
    a('v_lshlrev_b32 v%d, 4, v1' % VL)
    a('s_cmp_ge_u32 s22, 160\ns_cbranch_scc1 W3_role')
    a('s_cmp_ge_u32 s22, 128\ns_cbranch_scc1 RH_role')
    a('s_cmp_ge_u32 s22, 64\ns_cbranch_scc1 RT_role')
    gen_RU(c)
    gen_RT(c)
    gen_RH(c)
    gen_W3(c)
```

```python
import sys, os
sys.path.insert(0, os.path.dirname(os.path.abspath(__file__)))
from asm import *
from layout import *
import prep
NAME = 'parallel_sum__memory_aug_recurrent_mem_tr__dense_activation_silu__prompt'

def kd(name, vgpr=512, acc=256):
    return '''.p2align 6
.amdhsa_kernel %s
  .amdhsa_next_free_vgpr %d
  .amdhsa_next_free_sgpr 102
  .amdhsa_accum_offset %d
  .amdhsa_group_segment_fixed_size 0
  .amdhsa_kernarg_size 104
  .amdhsa_user_sgpr_count 2
  .amdhsa_user_sgpr_kernarg_segment_ptr 1
  .amdhsa_system_sgpr_workgroup_id_x 1
.end_amdhsa_kernel
''' % (name, vgpr, acc)

def build(opts):
    head = open('cdna_kernels/%s.s.ref' % NAME).read().split('\n')
    head = [l for l in head if l.startswith(';') and '@launch' not in l and 'Override' not in l and 'grid=ceil' not in l]
    kernels = []
    a = Asm(); prep.gen_prep(a); kernels.append(('prep_kernel', a, 143360))
    if not opts.get('prep_only'):
        import mainker
        b = Asm(); mainker.gen_main(b, opts); kernels.append(('main_kernel', b, 163840))
    out = '\n'.join(head) + '\n'
    for n, k, lds in kernels:
        out += '; @launch kernel=%s grid=(256,1,1) block=(256,1,1) lds=%d\n' % (n, lds)
    out += '.amdgcn_target "amdgcn-amd-amdhsa--gfx950"\n.text\n'
    nbad = 0
    for n, k, lds in kernels:
        nbad += len(check_hazards(k.lines))
        out += '.globl %s\n.p2align 8\n.type %s,@function\n' % (n, n) + k.text()
    out += '.section .rodata,"a"\n'
    for n, k, lds in kernels:
        out += kd(n)
    return out, nbad

if __name__ == '__main__':
    opts = {}
    path = 'cdna_kernels/%s.s' % NAME
    for x in sys.argv[1:]:
        if x.startswith('-o'):
            path = x[2:]
        elif '=' in x:
            k, v = x.split('='); opts[k] = int(v)
        else:
            opts[x] = 1
    txt, nbad = build(opts)
    open(path, 'w').write(txt)
    print('wrote', path, len(txt), 'bytes; hazards:', nbad)
```

```python
from asm import *
from layout import *
from prep import srd, f2u

OOB = 0x40000000
DUMMY = TS + (1 << 20) - 65536
NEGBIG = f2u(-1.4426950e9)

def WREG(b):
    return 256 + 8 * b if b < 32 else 120 + 8 * (b - 32)

class Ctx:
    def __init__(self, a, opts):
        self.a = a; self.opts = opts
        self.ts = opts.get('ts', 0)
    def spin_head(self, name):
        l = self.a.newlabel(name)
        self.a.label(l)
        self.a('s_sub_u32 s23, s23, 1\ns_cbranch_scc1 M_exit')
        return l
    def check_poison(self, regs, tmp):
        a = self.a
        a('v_max3_u32 v%d, v%d, v%d, v%d' % (tmp, regs[0], regs[1], regs[2]))
        i = 3
        while i + 1 < len(regs):
            a('v_max3_u32 v%d, v%d, v%d, v%d' % (tmp, tmp, regs[i], regs[i + 1])); i += 2
        if i < len(regs):
            a('v_max_u32 v%d, v%d, v%d' % (tmp, tmp, regs[i]))
        a('v_cmp_eq_u32 vcc, -1, v%d' % tmp)
    def wait_flags(self, name, soff, n, tmp):
        a = self.a
        l = self.spin_head(name)
        a('buffer_load_dword%s %s, off, s[4:7], s%d sc1' % ('' if n == 1 else 'x%d' % n, vr(tmp, n), soff))
        a('s_waitcnt vmcnt(0)')
        for i in range(1, n):
            a('v_min_u32 v%d, v%d, v%d' % (tmp, tmp, tmp + i))
        a('v_cmp_eq_u32 vcc, 0, v%d\ns_cbranch_vccnz %s' % (tmp, l))
    def poll(self, name, loads, regs, tmp, depth, pre=None):
        a = self.a
        for d in range(depth - 1):
            for l in loads: a(l)
        lab = self.spin_head(name)
        for l in loads: a(l)
        a('s_waitcnt vmcnt(%d)' % (len(loads) * (depth - 1)))
        if pre: pre()
        self.check_poison(regs, tmp)
        a('s_cbranch_vccnz %s' % lab)
    def rt(self, i, wait=True):
        if self.opts.get('rt', 0):
            if wait: self.a('s_waitcnt vmcnt(0)')
            self.a('s_memrealtime s[%d:%d]\ns_waitcnt lgkmcnt(0)' % (90 + 2 * i, 91 + 2 * i))
            if self.opts.get('clk', 0) and i >= 2:
                self.a('s_memtime s[%d:%d]\ns_waitcnt lgkmcnt(0)' % (86 + 2 * i, 87 + 2 * i))
    def end(self):
        self.a('s_branch M_exit' if self.opts.get('rt', 0) else 's_endpgm')
    def stamp(self, i):
        if self.ts:
            self.a('%s s[%d:%d]' % ('s_memrealtime' if self.ts == 2 else 's_memtime', 64 + 2 * i, 65 + 2 * i))
    def flush_stamps(self, n, role_slot_sgpr, tmp):
        if not self.ts: return
        a = self.a
        a('s_waitcnt lgkmcnt(0)')
        a('s_lshl_b32 s62, s%d, 6\ns_add_u32 s62, s62, s24\ns_lshl_b32 s62, s62, 6\ns_add_u32 s62, s62, 0x%x' % (role_slot_sgpr, TS))
        for i in range(n):
            a('v_writelane_b32 v%d, s%d, %d' % (tmp, 64 + 2 * i, i))
        a('v_writelane_b32 v%d, s23, 15' % tmp)
        a('v_mbcnt_lo_u32_b32 v%d, -1, 0\nv_lshlrev_b32 v%d, 2, v%d' % (tmp + 1, tmp + 1, tmp + 1))
        a('s_mov_b64 exec, 0xffff')
        a('buffer_store_dword v%d, v%d, s[4:7], s62 offen' % (tmp, tmp + 1))
        a('s_mov_b64 exec, -1')

def load_weights(a, blocks, sbase, vl16):
    n = 0
    for reg, off in blocks:
        a('s_add_u32 s63, s%d, 0x%x' % (sbase, off))
        a('buffer_load_dwordx4 %s, v%d, s[4:7], s63 offen' % (R(reg, 4), vl16))
        a('buffer_load_dwordx4 %s, v%d, s[4:7], s63 offen offset:1024' % (R(reg + 4, 4), vl16))
        n += 2
        if n > 48 and n % 8 == 0:
            a('s_waitcnt vmcnt(48)')

def smf(a, d, x, wreg, idx):
    a('v_smfmac_f32_16x16x64_bf16 %s, %s, %s, v%d' % (vr(d, 4), vr(x, 4), R(wreg, 8), idx))
def cvt(a, d, s0, s1):
    a('v_cvt_pk_bf16_f32 v%d, v%d, v%d' % (d, s0, s1))

def gen_chainA(c, w):
    a = c.a
    M = lambda p: 4 * p if p < 3 else 4 * p + 4
    ACC = lambda t: 32 + 4 * t
    KEY0 = [60, 68, 76]
    KEY1 = [8, 0, ACC(3)]
    A2a, A2b, D2a, D2b, TS0, TS1 = 84, 88, 92, 96, 100, 104
    SEL, IDX, VL, VMK0, VMK1, VSW, VSR0, VSR, VPST = 108, 112, 113, 114, 115, 116, 117, 118, 119
    SEL6 = SEL + 2 * (w % 2)
    XKL = 8192 + w * 8192; SB = 40960; NEG = 47616
    kk = lambda p: (2 * w + p) % 7
    a.label('A_w%d' % w)
    a('v_mov_b32 v%d, v1\nv_lshlrev_b32 v%d, 4, v1' % (A2a, VL))
    LN = A2a
    a('s_mul_i32 s26, s25, 0x%x\ns_add_u32 s26, s26, 0x%x' % (MAT, AFR + w * 49 * 2048))
    load_weights(a, [(WREG(t * 7 + p), (t * 7 + kk(p)) * 2048) for p in range(7) for t in range(7)], 26, VL)
    a('v_and_b32 v0, 15, v%d\nv_lshrrev_b32 v1, 4, v%d\nv_and_b32 v2, 7, v%d\nv_bfe_u32 v3, v%d, 3, 1' % (LN, LN, LN, LN))
    a('v_mov_b32 v4, 0x4444\nv_mov_b32 v5, 0xeeee\nv_cmp_eq_u32 vcc, 1, v3\ns_nop 1\nv_cndmask_b32 v%d, v4, v5, vcc' % IDX)
    a('v_and_b32 v4, 1, v1\nv_lshlrev_b32 v4, 2, v4\nv_sub_u32 v4, v2, v4')
    for dw in range(2):
        a('v_mov_b32 v6, 0')
        a('v_cmp_eq_u32 vcc, %d, v4\nv_mov_b32 v5, 0x3f80\ns_nop 0\nv_cndmask_b32 v6, v6, v5, vcc' % (2 * dw))
        a('v_cmp_eq_u32 vcc, %d, v4\nv_mov_b32 v5, 0x3f800000\ns_nop 0\nv_cndmask_b32 v6, v6, v5, vcc' % (2 * dw + 1))
        a('v_cmp_eq_u32 vcc, 0, v3\ns_nop 1\nv_cndmask_b32 v%d, 0, v6, vcc' % (SEL + dw))
        a('v_cmp_eq_u32 vcc, 1, v3\ns_nop 1\nv_cndmask_b32 v%d, 0, v6, vcc' % (SEL + 2 + dw))
    a('v_lshlrev_b32 v4, 4, v2\nv_lshl_add_u32 v%d, v1, 8, v4' % VMK0)
    a('v_lshrrev_b32 v5, 1, v1\nv_lshl_add_u32 v4, v5, 8, v4')
    a('v_and_b32 v6, 1, v1\nv_cmp_eq_u32 vcc, 1, v6')
    a('v_mov_b32 v7, %d\nv_mov_b32 v8, %d\nv_cndmask_b32 v7, v7, v8, vcc\nv_add_u32 v%d, v4, v7' % ((4 + w // 2) * 1024 + (w % 2) * 128, 6 * 1024 + (w // 2) * 128, VMK1))
    a('v_lshl_add_u32 v4, v6, 2, v5\nv_mul_u32_u24 v4, 208, v4\nv_lshl_add_u32 v4, v0, 2, v4\nv_add_u32 v%d, %d, v4' % (VSW, SB + w * 1664))
    a('v_lshrrev_b32 v4, 5, v%d\nv_and_b32 v9, 31, v%d' % (LN, LN))
    a('v_bfe_u32 v12, v9, 2, 1\nv_and_b32 v13, 2, v9\nv_or_b32 v12, v12, v13\nv_bfe_u32 v13, v9, 3, 1\nv_lshl_or_b32 v12, v13, 2, v12\nv_and_b32 v13, 1, v9\nv_lshl_or_b32 v12, v13, 3, v12')
    a('v_bfe_u32 v14, v9, 1, 1\nv_lshl_or_b32 v13, v13, 1, v14\nv_or_b32 v13, 16, v13')
    a('v_cmp_gt_u32 s[28:29], 20, v9\nv_cmp_gt_u32 vcc, 16, v9\nv_add_u32 v10, %d, v4\nv_mul_u32_u24 v11, 208, v10' % (2 * w))
    a('v_cndmask_b32 v9, v13, v12, vcc')
    a('v_cndmask_b32 v12, 0, v9, s[28:29]\nv_lshl_add_u32 v11, v12, 3, v11\nv_add_u32 v%d, %d, v11' % (VSR, SB))
    a('v_mov_b32 v12, %d\nv_cndmask_b32 v%d, v12, v%d, s[28:29]' % (NEG, VSR0, VSR))
    a('s_and_b32 s27, s25, 1\ns_bfe_u32 s30, s25, 0x10001\ns_lshr_b32 s31, s25, 2')
    a('v_bfe_u32 v12, v9, 2, 1\nv_lshlrev_b32 v12, 8, v12')
    a('v_and_b32 v13, 1, v9\nv_lshl_add_u32 v12, v13, 7, v12')
    a('v_bfe_u32 v14, v9, 1, 1\nv_lshl_add_u32 v12, v14, 3, v12')
    a('v_bfe_u32 v15, v9, 3, 1\nv_lshl_add_u32 v12, v15, 2, v12')
    a('s_lshl_b32 s32, s30, 10\ns_lshl_b32 s33, s27, 9\ns_add_u32 s32, s32, s33\nv_add_u32 v12, s32, v12')
    a('v_lshlrev_b32 v14, 3, v14\nv_lshl_add_u32 v14, v13, 7, v14')
    a('s_lshl_b32 s32, s27, 2\ns_lshl_b32 s33, s30, 8\ns_add_u32 s32, s32, s33\ns_add_u32 s32, s32, 2048\nv_add_u32 v14, s32, v14')
    a('v_cmp_gt_u32 vcc, 16, v9\ns_nop 1\nv_cndmask_b32 v12, v14, v12, vcc\nv_lshl_add_u32 v12, v10, 4, v12')
    a('s_mul_i32 s32, s31, 2560\nv_add_u32 v12, s32, v12\nv_mov_b32 v13, 0x%x\nv_cndmask_b32 v%d, v13, v12, s[28:29]' % (OOB, VPST))
    if w == 0:
        a('v_mov_b32 v4, 0xff800000\nv_mov_b32 v5, v4\nv_mov_b32 v6, %d\nds_write_b64 v6, v[4:5]' % NEG)
    a('s_mov_b64 s[56:57], s[28:29]\ns_mov_b32 s33, 0x%x' % f2u(64.0))
    a('s_mov_b32 s24, 0\ns_mov_b32 s26, 0x%x\ns_mov_b32 s27, 0x%x\ns_mov_b32 s28, 0x%x' % (MEMC, PC, XK + w * 8192))
    def dk(i):
        if i == 0: a('s_mov_b32 m0, %d\ns_add_u32 s29, s28, 4096' % XKL)
        if i == 6: a('s_mov_b32 m0, %d\ns_nop 0' % (XKL + 4096))
        a('buffer_load_dwordx4 v%d, s[4:7], s%d offen offset:%d lds' % (VL, 28 + i // 4, (i % 4) * 1024))
    for i in (0, 1, 2, 3, 6, 7, 4, 5): dk(i)
    a('s_add_u32 s28, s28, 32768')
    def ld_keys():
        a('s_waitcnt vmcnt(0)')
        for i in range(4):
            a('ds_read_b128 %s, v%d offset:%d' % (vr(KEY0[0] + 4 * i, 4), VL, XKL + i * 1024))
    selfp = c.opts.get('selfp', 0)
    if selfp:
        a('v_mov_b32 v0, -1\ns_add_u32 s29, s27, 10240')
        a('buffer_store_dword v0, v%d, s[4:7], s27 offen\nbuffer_store_dword v0, v%d, s[4:7], s29 offen' % (VPST, VPST))
    top = 'A_top%d' % w
    c.rt(2)
    a.label(top)
    ld_keys()
    for r in range(14):
        a('v_mov_b64 %s, 0' % vr(ACC(0) + 2 * r, 2))
    a('s_add_u32 s30, s26, %d\ns_add_u32 s31, s26, %d\ns_waitcnt lgkmcnt(0)' % (kk(0) * 1024, kk(1) * 1024))
    c.stamp(0)
    def wr_m():
        a('ds_write_b128 v%d, %s offset:%d' % (VL, vr(M(0), 4), kk(0) * 1024))
        if w < 3:
            a('ds_write_b128 v%d, %s offset:%d' % (VL, vr(M(1), 4), kk(1) * 1024))
    early = c.opts.get('da', 2) == 1
    c.poll('Apoll', ['buffer_load_dwordx4 %s, v%d, s[4:7], s%d offen sc1' % (vr(M(p), 4), VL, 30 + p) for p in range(2)],
           list(range(8)), A2a, c.opts.get('da', 2), wr_m if early else None)
    c.stamp(1)
    T = lambda t, p: smf(a, ACC(t), M(p), WREG(t * 7 + p), IDX)
    if not early: wr_m()
    nb = c.opts.get('nb', 6)
    for t in range(nb): T(t, 0)
    a('s_waitcnt lgkmcnt(0)\ns_barrier')
    def rdkey(blk, tau, aa):
        dst = (KEY0 if blk == 0 else KEY1)[tau] + 4 * aa
        if tau < 2:
            a('ds_read_b128 %s, v%d offset:%d' % (vr(dst, 4), VL, XKL + (blk * 4 + tau * 2 + aa) * 1024))
        elif blk == 0:
            a('ds_read_b128 %s, v%d offset:%d' % (vr(dst, 4), VMK0, w * 1024 + aa * 128))
        else:
            a('ds_read_b128 %s, v%d offset:%d' % (vr(dst, 4), VMK1, aa * 512))
    RK = lambda *x: (lambda: rdkey(*x))
    RM = lambda p: (lambda: a('ds_read_b128 %s, v%d offset:%d' % (vr(M(p), 4), VL, kk(p) * 1024)))
    def CV(src, dst, h): return lambda: cvt(a, dst + h, src + 2 * h, src + 2 * h + 1)
    def Z(t, h): return lambda: a('v_mov_b64 %s, 0' % vr(ACC(t) + 2 * h, 2))
    def mt(d, src): return lambda: a('v_mfma_f32_16x16x32_bf16 %s, %s, %s, 0' % (vr(d, 4), vr(src, 4), vr(SEL, 4)))
    S = lambda tau, blk: (lambda: smf(a, ACC(tau), TS0 if blk == 0 else TS1, (KEY0 if blk == 0 else KEY1)[tau], IDX))
    DK = lambda i: (lambda: dk(i))
    W = lambda x: (lambda: a(x))
    RM(2)(); RM(3)()
    seq = [(t, 0) for t in range(nb, 7)] + [(t, 1) for t in range(7)]
    f1 = [RM(4), RM(5), RM(6), RK(0, 2, 0), RK(0, 2, 1)]
    for n, (t, p) in enumerate(seq):
        T(t, p)
        if n < len(f1): f1[n]()
    a('s_waitcnt lgkmcnt(6)')
    f2 = [[W('s_waitcnt vmcnt(0)'), RK(1, 1, 0)], [RK(1, 1, 1)], [], [DK(0)], [], [DK(1)], []]
    for t in range(7):
        T(t, 2)
        for f in f2[t]: f()
    a('s_waitcnt lgkmcnt(4)')
    dkt = c.opts.get('dkt', 0)
    fill = [
        [[RK(1, 0, 0)], [RK(1, 0, 1)], [DK(2)], []],
        [[DK(3)], [CV(ACC(0), A2a, 0)], [CV(ACC(0), A2a, 1)], [Z(0, 0)]],
        [[Z(0, 1)], [CV(ACC(1), A2a + 2, 0)], [CV(ACC(1), A2a + 2, 1)], [Z(1, 0), mt(D2a, A2a), W('s_waitcnt lgkmcnt(0)'), DK(6)] + ([DK(4)] if dkt else [])],
        [[Z(1, 1)], [CV(ACC(2), A2b, 0)], [CV(ACC(2), A2b, 1)], [CV(D2a, TS0, 0)]],
        [[CV(D2a, TS0, 1)], [CV(ACC(3), A2b + 2, 0)], [CV(ACC(3), A2b + 2, 1)], [Z(2, 0), mt(D2b, A2b), DK(7)] + ([DK(5)] if dkt else [])],
        [[Z(2, 1)], [CV(ACC(4), A2a, 0)], [CV(ACC(4), A2a, 1)], [CV(D2b, TS0 + 2, 0)]],
        [[CV(D2b, TS0 + 2, 1)], [CV(ACC(5), A2a + 2, 0)], [CV(ACC(5), A2a + 2, 1)], [RK(1, 2, 0)]],
    ]
    for t in range(7):
        for j in range(4):
            T(t, 3 + j)
            for f in fill[t][j]: f()
    c.stamp(2)
    mt(D2a, A2a)()
    RK(1, 2, 1)()
    S(0, 0)()
    CV(ACC(6), A2b, 0)(); CV(ACC(6), A2b, 1)()
    a('s_nop 1')
    a('v_mfma_f32_16x16x16_bf16 %s, %s, %s, 0' % (vr(D2b, 4), vr(A2b, 2), vr(SEL6, 2)))
    CV(D2a, TS1, 0)()
    S(1, 0)()
    CV(D2a, TS1, 1)()
    S(2, 0)()
    CV(D2b, TS1 + 2, 0)(); CV(D2b, TS1 + 2, 1)()
    a('s_waitcnt lgkmcnt(0)\ns_nop 0')
    S(0, 1)(); S(1, 1)(); S(2, 1)()
    col = [0, 64, 128]
    for tau in range(3):
        r = ACC(tau)
        if tau == 2: a('s_nop 0')
        a('v_permlane32_swap_b32 v%d, v%d\nv_permlane32_swap_b32 v%d, v%d' % (r, r + 1, r + 2, r + 3))
        a('v_add_f32 v%d, v%d, v%d\nv_add_f32 v%d, v%d, v%d' % (r, r, r + 1, r + 2, r + 2, r + 3))
        a('ds_write2_b32 v%d, v%d, v%d offset0:%d offset1:%d' % (VSW, r, r + 2, col[tau] // 4, col[tau] // 4 + 104))
    a('s_waitcnt lgkmcnt(0)\ns_barrier')
    c.stamp(3)
    q = 44
    a('ds_read_b64 %s, v%d' % (vr(q, 2), VSR0))
    for p in range(1, 4):
        a('ds_read_b64 %s, v%d offset:%d' % (vr(q + 2 * p, 2), VSR, p * 1664))
    if not dkt: dk(4); dk(5)
    a('s_waitcnt lgkmcnt(2)')
    a('v_add_f32 v%d, v%d, v%d\nv_add_f32 v%d, v%d, v%d' % (q, q, q + 2, q + 1, q + 1, q + 3))
    a('s_waitcnt lgkmcnt(0)')
    a('v_add_f32 v%d, v%d, v%d\nv_add_f32 v%d, v%d, v%d' % (q + 4, q + 4, q + 6, q + 5, q + 5, q + 7))
    a('v_add_f32 v%d, v%d, v%d\nv_add_f32 v%d, v%d, v%d' % (q + 4, q, q + 4, q + 5, q + 1, q + 5))
    def reduce32(op, r, tmp):
        for sh in (8, 4, 2, 1):
            a('s_nop 1\n%s_dpp v%d, v%d, v%d row_ror:%d row_mask:0xf bank_mask:0xf' % (op, r, r, r, sh))
        a('v_mov_b32 v%d, v%d\ns_nop 1\nv_permlane16_swap_b32 v%d, v%d\n%s v%d, v%d, v%d' % (tmp, r, tmp, r, op, r, r, tmp))
    def truemax():
        a('v_max_f32 v%d, v%d, v%d' % (q + 2, q + 4, q + 5))
        reduce32('v_max_f32', q + 2, q + 3)
        a('v_sub_f32 v%d, v%d, v%d\nv_sub_f32 v%d, v%d, v%d' % (q, q + 4, q + 2, q + 1, q + 5, q + 2))
        a('v_exp_f32 v%d, v%d\nv_exp_f32 v%d, v%d\ns_nop 0' % (q, q, q + 1, q + 1))
    fast = c.opts.get('fast', 1)
    if fast:
        a('v_max_f32 v%d, |v%d|, |v%d|' % (q + 2, q + 4, q + 5))
        a('v_exp_f32 v%d, v%d\nv_cmp_lt_f32 vcc, s33, v%d\nv_exp_f32 v%d, v%d' % (q, q + 4, q + 2, q + 1, q + 5))
        a('s_and_b64 vcc, vcc, s[56:57]\ns_cbranch_scc1 A_max%d' % w)
        a.label('A_sum%d' % w)
    else:
        truemax()
    a('v_add_f32 v%d, v%d, v%d' % (q + 2, q, q + 1))
    reduce32('v_add_f32', q + 2, q + 3)
    a('v_rcp_f32 v%d, v%d\ns_nop 0' % (q + 2, q + 2))
    a('v_mul_f32 v%d, v%d, v%d\nv_mul_f32 v%d, v%d, v%d' % (q, q, q + 2, q + 1, q + 1, q + 2))
    cvt(a, q, q, q + 1)
    a('v_min_u32 v%d, -2, v%d' % (q, q))
    a('buffer_store_dword v%d, v%d, s[4:7], s27 offen' % (q, VPST))
    c.stamp(4)
    if c.opts.get('ackw', 0):
        a('s_waitcnt vmcnt(0)')
        c.stamp(5)
    if selfp:
        a('s_add_u32 s29, s27, 20480\ns_cmp_lt_u32 s24, 61\ns_cselect_b32 s29, s29, 0x%x\nv_mov_b32 v%d, -1' % (DUMMY, q + 1))
        a('buffer_store_dword v%d, v%d, s[4:7], s29 offen' % (q + 1, VPST))
    c.flush_stamps(6, 59, q + 4)
    a('s_add_u32 s24, s24, 1\ns_add_u32 s26, s26, 7168\ns_add_u32 s27, s27, 10240\ns_add_u32 s28, s28, 32768')
    a('s_cmp_lt_u32 s24, 63\ns_cbranch_scc1 %s' % top)
    c.end()
    if fast:
        a.label('A_max%d' % w)
        truemax()
        a('s_branch A_sum%d' % w)

def gen_chainB(c):
    a = c.a
    M = lambda k: 4 * k
    UU = lambda q, tau: 28 + 16 * q + 8 * tau
    VA = lambda i: (60, 64, 116)[i]
    VMR = lambda tau: 68 + 8 * tau
    ST = [84, 92]
    IDX, VL, VP0, VP1, VPM, VRW, VRR, VMS, VFL, TMP = 100, 101, 102, 103, 104, 105, 106, 107, 108, 109
    RB = 8192; WL = 16384
    a.label('B_role')
    LN = 110
    a('v_mov_b32 v%d, v1\nv_lshlrev_b32 v%d, 4, v1' % (LN, VL))
    a('s_mul_i32 s26, s20, 0x%x\ns_mul_i32 s27, s25, %d\ns_add_u32 s26, s26, s27\ns_add_u32 s26, s26, 0x%x' % (4 * MAT, 2 * 7 * 2048, BFR))
    tiles = [(2 * q + hp, tau) for q in range(2) for tau in range(2) for hp in range(2)]
    a('s_mul_i32 s34, s20, 14336\ns_add_u32 s34, s34, %d' % WL)
    hl, tau = tiles[7]
    for i in range(14):
        a('s_add_u32 m0, s34, %d\ns_add_u32 s63, s26, 0x%x' % (i * 1024, hl * MAT + tau * 7 * 2048 + i * 1024))
        a('buffer_load_dwordx4 v%d, s[4:7], s63 offen lds' % VL)
    load_weights(a, [(WREG(tt * 7 + k), tiles[tt][0] * MAT + (tiles[tt][1] * 7 + k) * 2048) for tt in range(7) for k in range(7)], 26, VL)
    a('v_and_b32 v0, 15, v%d\nv_lshrrev_b32 v1, 4, v%d\nv_and_b32 v2, 7, v%d\nv_bfe_u32 v3, v%d, 3, 1' % (LN, LN, LN, LN))
    a('v_mov_b32 v4, 0x4444\nv_mov_b32 v5, 0xeeee\nv_cmp_eq_u32 vcc, 1, v3\ns_nop 1\nv_cndmask_b32 v%d, v4, v5, vcc' % IDX)
    a('v_lshrrev_b32 v4, 1, v1\nv_lshlrev_b32 v4, 8, v4\nv_lshl_add_u32 v4, v0, 4, v4\nv_add_u32 v%d, 2048, v4' % VPM)
    a('s_lshl_b32 s27, s20, 11\ns_add_u32 s28, s27, 1024\ns_min_u32 s28, s28, 6144')
    a('v_add_u32 v%d, s27, v%d\nv_add_u32 v%d, s28, v%d' % (VP0, VL, VP1, VL))
    a('v_and_b32 v6, 1, v1\nv_lshrrev_b32 v5, 1, v1\nv_lshl_add_u32 v4, v6, 2, v5\nv_mul_u32_u24 v4, 144, v4\nv_lshl_add_u32 v4, v0, 2, v4')
    a('s_mul_i32 s27, s20, 1152\ns_add_u32 s27, s27, %d\nv_add_u32 v%d, s27, v4' % (RB, VRW))
    a('v_bfe_u32 v4, v%d, 2, 3\nv_and_b32 v5, 3, v%d\nv_mul_u32_u24 v6, 144, v4\nv_lshl_add_u32 v6, v5, 3, v6' % (LN, LN))
    a('s_lshl_b32 s27, s20, 5\ns_add_u32 s27, s27, %d\nv_add_u32 v%d, s27, v6' % (RB, VRR))
    a('s_lshr_b32 s27, s25, 1\ns_lshl_b32 s27, s27, 10\ns_and_b32 s28, s25, 1\ns_lshl_b32 s28, s28, 7\ns_add_u32 s27, s27, s28\ns_lshl_b32 s28, s20, 8\ns_add_u32 s27, s27, s28')
    a('v_lshlrev_b32 v6, 2, v%d\nv_add_u32 v6, s27, v6\nv_mov_b32 v7, 0x%x\nv_cmp_gt_u32 vcc, 32, v%d\ns_nop 1\nv_cndmask_b32 v%d, v7, v6, vcc' % (LN, OOB, LN, VMS))
    a('s_lshl_b32 s27, s20, 4\nv_lshlrev_b32 v6, 6, v%d\nv_add_u32 v%d, s27, v6' % (LN, VFL))
    a('v_add_u32 v%d, s34, v%d' % (LN, VL))
    VWL = LN
    a('s_mov_b32 s24, 0\ns_mov_b32 s26, 0x%x\ns_mov_b64 s[60:61], 0' % MEMC)
    a('s_mul_i32 s27, s20, 2560\ns_add_u32 s27, s27, 0x%x' % PC)
    a('s_mul_i32 s28, s20, %d\ns_lshl_b32 s29, s25, 11\ns_add_u32 s28, s28, s29\ns_add_u32 s28, s28, 0x%x' % (4 * 28 * 1024, UB))
    a('s_mov_b32 s35, 0x%x' % FLG_U)
    selfp = c.opts.get('selfp', 0)
    if selfp:
        a('v_mov_b32 v0, -1\ns_add_u32 s31, s26, 7168\ns_add_u32 s32, s26, 14336')
        a('buffer_store_dword v0, v%d, s[4:7], s31 offen\nbuffer_store_dword v0, v%d, s[4:7], s32 offen' % (VMS, VMS))
    c.rt(2)
    a.label('B_top')
    c.stamp(0)
    l = c.spin_head('Bpoll')
    a('buffer_load_dwordx4 %s, v%d, s[4:7], s26 offen sc1' % (vr(ST[0], 4), VP0))
    a('buffer_load_dwordx4 %s, v%d, s[4:7], s26 offen sc1' % (vr(ST[0] + 4, 4), VP1))
    a('s_waitcnt vmcnt(0)')
    c.check_poison(list(range(ST[0], ST[0] + 8)), TMP)
    a('s_cbranch_vccnz %s' % l)
    c.stamp(1)
    a('ds_write_b128 v%d, %s\nds_write_b128 v%d, %s' % (VP0, vr(ST[0], 4), VP1, vr(ST[0] + 4, 4)))
    a('s_bitcmp1_b64 s[60:61], s24\ns_cbranch_scc1 B_uok')
    l = c.spin_head('Bufl')
    a('buffer_load_dwordx4 v[28:31], v%d, s[4:7], s35 offen sc1\ns_waitcnt vmcnt(0)' % VFL)
    a('v_min_u32 v28, v28, v29\nv_min3_u32 v28, v28, v30, v31\nv_cmp_ne_u32 s[60:61], 0, v28\ns_nop 1')
    a('s_bitcmp0_b64 s[60:61], s24\ns_cbranch_scc1 %s' % l)
    a.label('B_uok')
    def ldu(i):
        q, hp, tau = i // 4, (i // 2) % 2, i % 2
        a('s_add_u32 s31, s28, %d' % ((2 * q + hp) * 28 * 1024))
        a('buffer_load_dwordx4 %s, v%d, s[4:7], s31 offen offset:%d%s' % (vr(UU(q, tau) + 4 * hp, 4), VL, tau * 1024, '' if c.opts.get('uplain', 0) else ' sc1'))
    ldu(0); ldu(1)
    for r in range(4): a('v_mov_b64 %s, 0' % vr(60 + 2 * r, 2))
    a('s_waitcnt lgkmcnt(0)\ns_barrier')
    c.stamp(5)
    for k in range(7):
        a('ds_read_b128 %s, v%d offset:%d' % (vr(M(k), 4), VL, k * 1024))
    V7 = 112
    acc = lambda tt: V7 if tt == 7 else VA(tt % 3)
    def post(tt):
        hl, tau = tiles[tt]
        return [lambda h=h: cvt(a, VMR(tau) + 2 * hl + h, acc(tt) + 2 * h, acc(tt) + 2 * h + 1) for h in range(2)]
    def zer(x):
        return [lambda r=r: a('v_mov_b64 %s, 0' % vr(x + 2 * r, 2)) for r in range(2)]
    def ldw(k, h):
        return lambda: a('ds_read_b128 %s, v%d offset:%d' % (vr(ST[k % 2] + 4 * h, 4), VWL, k * 2048 + 1024 * h))
    seq = [(tt, k) for k in range(7) for tt in range(2)] + [(tt, k) for tt in range(2, 7) for k in range(7)]
    for k in range(7):
        seq.insert(15 + 6 * k, (7, k))
    fl = {}
    def put(pos, fs):
        for f in fs:
            while pos in fl: pos += 1
            fl[pos] = f
    pos7 = [seq.index((7, k)) for k in range(7)]
    put(8, [ldw(0, 0), ldw(0, 1), ldw(1, 0), ldw(1, 1)])
    put(12, zer(V7))
    for k in range(5): put(pos7[k], [ldw(k + 2, 0), ldw(k + 2, 1)])
    put(0, zer(VA(2)))
    for tt in range(6):
        last = max(i for i, x in enumerate(seq) if x[0] == tt)
        put(last + 2, post(tt) + (zer(acc(tt)) if tt < 4 else []))
    put(pos7[6] + 2, post(7))
    for i in range(2, 8): put(i, [lambda i=i: ldu(i)])
    nld = 0
    for j, (tt, k) in enumerate(seq):
        if tt == 0: a('s_waitcnt lgkmcnt(%d)' % (6 - k + nld))
        if tt < 7:
            smf(a, acc(tt), M(k), WREG(tt * 7 + k), IDX)
        else:
            a('s_waitcnt lgkmcnt(%d)' % (nld - 2 * (k + 1)))
            smf(a, V7, M(k), ST[k % 2], IDX)
        if j in fl:
            n0 = len(a.lines)
            fl[j]()
            nld += sum(1 for l in a.lines[n0:] if l.startswith('ds_read'))
    assert max(fl) < len(seq), max(fl)
    c.stamp(6)
    for f in zer(VA(1)) + zer(VA(2)): f()
    a('s_nop 5')
    for f in post(6): f()
    c.stamp(2)
    if c.opts.get('bgw', 0):
        a('s_waitcnt vmcnt(0)')
        c.stamp(7)
    pv = c.opts.get('ptest', 0)
    if pv:
        if pv & 1: a('buffer_load_dwordx4 v[8:11], v%d, s[4:7], s27 offen sc1' % VPM)
        if pv & 2: a('buffer_load_dwordx4 v[0:3], v%d, s[4:7], s27 offen sc1' % VL)
        if pv & 4: a('buffer_load_dwordx4 v[4:7], v%d, s[4:7], s27 offen offset:1024 sc1' % VL)
        a('s_waitcnt vmcnt(0)')
        c.stamp(7)
    c.poll('BpollP', ['buffer_load_dwordx4 v[8:11], v%d, s[4:7], s27 offen sc1' % VPM,
                      'buffer_load_dwordx4 v[0:3], v%d, s[4:7], s27 offen sc1' % VL,
                      'buffer_load_dwordx4 v[4:7], v%d, s[4:7], s27 offen offset:1024 sc1' % VL], list(range(12)), TMP, c.opts.get('db', 2))
    c.stamp(3)
    for tau in range(2):
        smf(a, VA(1 + tau), 8, VMR(tau), IDX)
        smf(a, VA(1 + tau), 0, UU(0, tau), IDX)
        smf(a, VA(1 + tau), 4, UU(1, tau), IDX)
    for tau in range(2):
        r = VA(1 + tau)
        if tau == 1: a('s_nop 2')
        a('v_permlane32_swap_b32 v%d, v%d\nv_permlane32_swap_b32 v%d, v%d' % (r, r + 1, r + 2, r + 3))
        a('v_add_f32 v%d, v%d, v%d\nv_add_f32 v%d, v%d, v%d' % (r, r, r + 1, r + 2, r + 2, r + 3))
        a('ds_write2_b32 v%d, v%d, v%d offset0:%d offset1:%d' % (VRW, r, r + 2, 16 * tau, 16 * tau + 72))
    a('s_add_u32 s26, s26, 7168')
    a('s_waitcnt lgkmcnt(0)\ns_barrier')
    for p in range(4):
        a('ds_read_b64 %s, v%d offset:%d' % (vr(12 + 2 * p, 2), VRR, p * 1152))
    a('s_waitcnt lgkmcnt(2)\nv_add_f32 v12, v12, v14\nv_add_f32 v13, v13, v15')
    a('s_waitcnt lgkmcnt(0)\nv_add_f32 v16, v16, v18\nv_add_f32 v17, v17, v19\nv_add_f32 v12, v12, v16\nv_add_f32 v13, v13, v17')
    cvt(a, 12, 12, 13)
    a('v_min_u32 v12, -2, v12')
    a('buffer_store_dword v12, v%d, s[4:7], s26 offen' % VMS)
    c.stamp(4)
    if c.opts.get('ackw', 0):
        a('s_waitcnt vmcnt(0)')
        c.stamp(7)
    if selfp:
        a('s_add_u32 s31, s26, 14336\ns_cmp_lt_u32 s24, 61\ns_cselect_b32 s31, s31, 0x%x\nv_mov_b32 v13, -1' % DUMMY)
        a('buffer_store_dword v13, v%d, s[4:7], s31 offen' % VMS)
    c.flush_stamps(8, 59, 14)
    a('s_add_u32 s24, s24, 1\ns_add_u32 s27, s27, 10240\ns_add_u32 s28, s28, 0x%x' % USEG)
    a('s_cmp_lt_u32 s24, 63\ns_cbranch_scc1 B_top')
    c.end()

def gen_relay(c):
    a = c.a
    a.label('R_role')
    a('s_cmp_lg_u32 s20, 0\ns_cbranch_scc1 M_exit')
    a('v_lshlrev_b32 v2, 4, v1\ns_mov_b32 s24, 1\ns_mov_b32 s26, 0x%x\ns_mov_b32 s27, 0x%x' % (MEMC + 7168, MEMX + 7168))
    a.label('R_top')
    a('s_add_u32 s28, s26, 4096\ns_add_u32 s29, s27, 4096')
    l = c.spin_head('Rp0')
    a('buffer_load_dword v3, off, s[4:7], s26 sc1\ns_waitcnt vmcnt(0)\nv_cmp_eq_u32 vcc, -1, v3\ns_cbranch_vccnz %s' % l)
    l = c.spin_head('Rpoll')
    for k in range(7):
        a('buffer_load_dwordx4 %s, v2, s[4:7], s%d offen offset:%d sc1' % (vr(4 + 4 * k, 4), 26 if k < 4 else 28, (k % 4) * 1024))
    a('s_waitcnt vmcnt(0)')
    c.check_poison(list(range(4, 32)), 3)
    a('s_cbranch_vccnz %s' % l)
    for k in range(7):
        a('buffer_store_dwordx4 %s, v2, s[4:7], s%d offen offset:%d sc1' % (vr(4 + 4 * k, 4), 27 if k < 4 else 29, (k % 4) * 1024))
    a('s_add_u32 s24, s24, 1\ns_add_u32 s26, s26, 7168\ns_add_u32 s27, s27, 7168')
    a('s_waitcnt vmcnt(0)')
    a('s_cmp_lt_u32 s24, 64\ns_cbranch_scc1 R_top')
    c.end()

def gen_prefetch(c):
    a = c.a
    a.label('F_role')
    a('v_lshlrev_b32 v2, 4, v1\ns_lshl_b32 s27, s20, 13\ns_add_u32 s27, s27, 0x%x\ns_mov_b32 s24, 0\ns_mov_b32 s26, 0x%x' % (XK + 32768, MEMC))
    a('s_and_b32 s29, s20, 1\ns_lshl_b32 s29, s29, 13\nv_lshl_add_u32 v40, v1, 7, s29')
    a('s_movk_i32 s30, 7168\ns_mov_b32 s31, 0x%x\ns_cmp_lt_u32 s20, 2\ns_cselect_b32 s30, 10240, s30\ns_cselect_b32 s31, 0x%x, s31\ns_sub_u32 s29, s30, 128' % (MEMC + 7168, PC))
    a('v_min_u32 v40, s29, v40')
    a.label('F_top')
    a('buffer_load_dword v41, v40, s[4:7], s31 offen sc1\ns_add_u32 s31, s31, s30')
    a('s_add_u32 s28, s27, 4096')
    for k in range(8):
        a('buffer_load_dwordx4 %s, v2, s[4:7], s%d offen offset:%d' % (vr(4 + 4 * k, 4), 27 if k < 4 else 28, (k % 4) * 1024))
    l = c.spin_head('Fpoll')
    a('buffer_load_dword v3, off, s[4:7], s26 sc1\ns_waitcnt vmcnt(0)\nv_cmp_eq_u32 vcc, -1, v3\ns_cbranch_vccnz %s' % l)
    a('s_add_u32 s24, s24, 1\ns_add_u32 s26, s26, 7168\ns_add_u32 s27, s27, 32768')
    a('s_cmp_lt_u32 s24, 63\ns_cbranch_scc1 F_top')
    c.end()

from workers import gen_workers

def gen_main(a, opts):
    c = Ctx(a, opts)
    a.label('main_kernel')
    c.rt(0, False)
    a('s_load_dwordx2 s[36:37], s[0:1], 0')
    a('s_load_dwordx8 s[40:47], s[0:1], 64')
    a('s_load_dwordx2 s[48:49], s[0:1], 96')
    a('v_lshrrev_b32 v2, 6, v0\nv_and_b32 v1, 63, v0\ns_nop 0\nv_readfirstlane_b32 s20, v2')
    a('s_getreg_b32 s21, hwreg(HW_REG_XCC_ID, 0, 4)')
    a('s_mov_b32 s23, 0x100000')
    a('s_waitcnt lgkmcnt(0)')
    srd(a, 4, 48, WS_BYTES)
    srd(a, 16, 46, 256)
    a('s_cmp_ge_u32 s21, 8\ns_cbranch_scc1 M_exit')
    a('v_mov_b32 v3, 0')
    a('s_cmp_lg_u32 s20, 0\ns_cbranch_scc1 M_tk')
    tk = opts.get('tk', 0)
    if tk:
        a('s_lshl_b32 s22, s21, 8\ns_add_u32 s22, s22, 0x%x\nv_mov_b32 v2, 1\ns_mov_b64 exec, 1' % (FLG_M + 1024))
    else:
        a('s_lshl_b32 s22, s21, 5\nv_mov_b32 v2, 1\ns_mov_b64 exec, 1')
    a('buffer_atomic_add v2, off, %s, s22 sc0%s' % ('s[4:7]' if tk else 's[16:19]', ' sc1' if tk == 2 else ''))
    a('s_waitcnt vmcnt(0)\nds_write_b32 v3, v2\ns_mov_b64 exec, -1')
    a.label('M_tk')
    a('s_waitcnt lgkmcnt(0)\ns_barrier\nds_read_b32 v2, v3\ns_waitcnt lgkmcnt(0)\nv_readfirstlane_b32 s22, v2\ns_barrier')
    a('s_mov_b32 s58, s22')
    a('s_cmp_ge_u32 s22, 32\ns_cbranch_scc1 M_exit')
    c.rt(1, False)
    a('s_lshl_b32 s59, s21, 5\ns_add_u32 s59, s59, s22\ns_lshl_b32 s59, s59, 2\ns_add_u32 s59, s59, s20\ns_and_b32 s59, s59, 127')
    a('s_cmp_lg_u32 s21, 0\ns_cbranch_scc1 W_roles')
    a('s_cmp_eq_u32 s22, 30\ns_cbranch_scc1 R_role')
    a('s_cmp_eq_u32 s22, 31\ns_cbranch_scc1 %s' % ('F_role' if opts.get('pref', 1) else 'M_exit'))
    a('s_sub_u32 s25, s22, 16\ns_cmp_ge_u32 s22, 16\ns_cbranch_scc1 B_role')
    a('s_mov_b32 s25, s22')
    for w in range(1, 4):
        a('s_cmp_eq_u32 s20, %d\ns_cbranch_scc1 A_w%d' % (w, w))
    for w in range(4):
        gen_chainA(c, w)
    a.label('M_exit')
    if opts.get('rt', 0):
        c.rt(3)
        a('s_lshl_b32 s62, s21, 5\ns_add_u32 s62, s62, s58\ns_lshl_b32 s62, s62, 2\ns_add_u32 s62, s62, s20\ns_lshl_b32 s62, s62, 4\ns_add_u32 s62, s62, 0x%x' % (TS + 0x80000))
        a('v_mov_b32 v0, s90\nv_mov_b32 v1, s92\nv_mov_b32 v2, s94\nv_mov_b32 v3, s96\ns_mov_b64 exec, 1\nbuffer_store_dwordx4 v[0:3], off, s[4:7], s62')
    a('s_endpgm')
    gen_chainB(c)
    gen_relay(c)
    gen_prefetch(c)
    gen_workers(c)
```

```python
from asm import *
from layout import *
import struct
def f2u(x): return struct.unpack('<I', struct.pack('<f', x))[0]

def srd(a, d, ptr, size, off=0):
    if off:
        a('s_add_u32 s%d, s%d, 0x%x' % (d, ptr, off))
        a('s_addc_u32 s%d, s%d, 0' % (d + 1, ptr + 1))
    else:
        a('s_mov_b32 s%d, s%d' % (d, ptr))
        a('s_mov_b32 s%d, s%d' % (d + 1, ptr + 1))
    a('s_mov_b32 s%d, 0x%x' % (d + 2, size))
    a('s_mov_b32 s%d, 0x20000' % (d + 3))

WSZ = 448 * 16 * 256 * 2

def gen_prep(a, opts={}):
    rt = opts.get('rt', 0)
    stf = ['', ' sc1', ' nt', ' sc0 sc1'][opts.get('stf', 0)]
    touch = opts.get('touch', 0)
    def end():
        if rt:
            a('s_waitcnt vmcnt(0)\ns_memrealtime s[62:63]\ns_waitcnt lgkmcnt(0)')
            a('s_lshl_b32 s59, s2, 2\ns_add_u32 s59, s59, s20\ns_lshl_b32 s59, s59, 4\ns_add_u32 s59, s59, 0x%x' % (TS + 0x90000))
            a('v_mov_b32 v0, s60\nv_mov_b32 v1, s62\nv_mov_b32 v2, s64\nv_mov_b32 v3, s66\ns_mov_b64 exec, 1\nbuffer_store_dwordx4 v[0:3], off, s[4:7], s59')
        a('s_endpgm')
    a.label('prep_kernel')
    if rt: a('s_memrealtime s[60:61]')
    a('s_cmp_ge_u32 s2, 256\ns_cbranch_scc1 P_end2')
    a('s_load_dwordx4 s[36:39], s[0:1], 0')
    a('s_load_dwordx8 s[40:47], s[0:1], 16')
    a('s_load_dwordx2 s[48:49], s[0:1], 96')
    a('v_lshrrev_b32 v2, 6, v0\nv_and_b32 v1, 63, v0\ns_nop 0\nv_readfirstlane_b32 s20, v2')
    a('s_and_b32 s21, s2, 7\ns_lshr_b32 s22, s2, 3')
    a('s_waitcnt lgkmcnt(0)')
    srd(a, 4, 48, WS_BYTES)
    a('s_cmp_ge_u32 s22, 28\ns_cbranch_scc1 P_ln')
    a('s_mul_i32 s23, s22, 37\ns_lshr_b32 s23, s23, 8')
    a('s_mul_i32 s24, s23, 7\ns_sub_u32 s24, s22, s24')
    a('s_and_b32 s25, s23, 1\ns_lshl_b32 s26, s21, 1\ns_add_u32 s25, s25, s26')
    a('v_and_b32 v10, 15, v1\nv_lshrrev_b32 v11, 4, v1')
    a('v_and_b32 v13, 7, v1\nv_xor_b32 v13, v13, v11\nv_lshlrev_b32 v4, 4, v13\nv_xor_b32 v5, 64, v4')
    a('v_lshrrev_b32 v13, 3, v1\nv_lshl_add_u32 v2, v13, 13, v4\nv_add_u32 v13, 8, v13\nv_lshl_add_u32 v3, v13, 13, v5')
    a('v_lshrrev_b32 v13, 1, v10\nv_xor_b32 v13, v13, v11\nv_lshlrev_b32 v13, 4, v13\nv_lshl_add_u32 v228, v10, 7, v13\nv_xor_b32 v229, 64, v228')
    a('s_lshl_b32 s26, s25, 9')
    a('s_lshl_b32 s27, s24, 19\ns_add_u32 s28, s27, s26\ns_lshl_b32 s27, s20, 17\ns_add_u32 s28, s28, s27')
    a('s_lshl_b32 s29, s20, 11')
    a('s_mul_i32 s32, s25, 0x%x' % MAT)
    a('s_mul_i32 s33, s20, 49\ns_add_u32 s33, s33, s24\ns_lshl_b32 s33, s33, 11\ns_add_u32 s32, s32, s33')
    a('v_lshlrev_b32 v12, 4, v1')
    a('s_cmp_ge_u32 s23, 2\ns_cbranch_scc1 P_bjob')
    ACC = lambda mu, t: 16 + (mu * 7 + t) * 4
    def epilogue(scale):
        a('s_nop 7')
        if rt: a('s_memrealtime s[64:65]')
        for t in range(7):
            o = 128 + 8 * t
            if scale:
                for mu in range(4):
                    for r in range(4):
                        a('v_mul_f32 v%d, s34, v%d' % (ACC(mu, t) + r, ACC(mu, t) + r))
            for aa in range(2):
                for q in range(4):
                    mu = aa + 2 * (q & 1); r0 = 2 * (q >> 1)
                    a('v_cvt_pk_bf16_f32 v%d, v%d, v%d' % (o + 4 * aa + q, ACC(mu, t) + r0, ACC(mu, t) + r0 + 1))
            a('buffer_store_dwordx4 %s, v12, s[4:7], s32 offen%s' % (vr(o, 4), stf))
            a('buffer_store_dwordx4 %s, v12, s[4:7], s32 offen offset:1024%s' % (vr(o + 4, 4), stf))
            if t < 6:
                a('s_add_u32 s32, s32, %d' % (7 * 2048))
        end()
    srd(a, 8, 40, WSZ)
    srd(a, 12, 42, WSZ)
    a('s_mov_b32 s34, 0x%x' % f2u(1.4426950408889634 / 16.0))
    a('v_bfe_u32 v13, v1, 3, 1\nv_bfe_u32 v14, v1, 4, 1\nv_lshl_add_u32 v13, v14, 2, v13')
    a('v_lshrrev_b32 v14, 5, v1\nv_lshl_add_u32 v15, v14, 4, v13\nv_lshl_add_u32 v14, v14, 3, v13')
    for hf in range(2):
        a('v_add_u32 v13, %d, v15\nv_lshl_add_u32 v%d, v13, 13, v%d' % (32 * hf, 6 + hf, 4 + hf))
        a('v_add_u32 v13, %d, v14\nv_lshl_add_u32 v%d, v13, 13, v%d' % (16 * hf, 8 + hf, 4 + hf))
    a('s_lshl_b32 s35, s20, 6')
    for t in range(4):
        a('s_add_u32 s27, s35, %d\ns_lshl_b32 s27, s27, 13\ns_add_u32 s%d, s27, s26' % (8 * (t // 2) + 2 * (t % 2), 50 + t))
    a('s_lshl_b32 s35, s20, 5')
    for t in (4, 5):
        a('s_add_u32 s27, s35, %d\ns_lshl_b32 s27, s27, 13\ns_add_u32 s%d, s27, s26' % (256 + 2 * (t % 2), 50 + t))
    a('s_lshr_b32 s35, s20, 1\ns_lshl_b32 s35, s35, 5\ns_and_b32 s27, s20, 1\ns_lshl_b32 s27, s27, 1\ns_add_u32 s27, s27, s35\ns_add_u32 s27, s27, 384')
    a('s_lshl_b32 s27, s27, 13\ns_add_u32 s56, s27, s26')
    a('s_mul_i32 s35, s20, 14336\ns_add_u32 s35, s35, 8192')
    rot = opts.get('rot', 1)
    for q in range(4):
        if rot: a('s_add_u32 s27, s24, %d\ns_and_b32 s27, s27, 3\ns_lshl_b32 s%d, s27, 7' % (q, 68 + q))
        else: a('s_movk_i32 s%d, %d' % (68 + q, 128 * q))
    def loadsA(q):
        buf = (q % 2) * 65536
        for hf in range(2):
            a('s_add_u32 m0, s29, %d\ns_add_u32 s27, s28, s%d' % (buf + hf * 1024, 68 + q))
            a('buffer_load_dwordx4 v%d, s[8:11], s27 offen lds' % (2 + hf))
        for t in range(7):
            for hf in range(2):
                a('s_add_u32 m0, s35, %d\ns_add_u32 s27, s%d, s%d' % (buf + t * 2048 + hf * 1024, 50 + t, 68 + q))
                a('buffer_load_dwordx4 v%d, s[12:15], s27 offen lds' % ((6 if t < 4 else 8) + hf))
    loadsA(0); loadsA(1)
    if rt and opts.get('rtks', 0) == 4: a('s_memrealtime s[66:67]\ns_waitcnt lgkmcnt(0)')
    if touch:
        a('v_lshlrev_b32 v13, 13, v1\ns_lshl_b32 s27, s24, 19\ns_add_u32 s27, s27, s26\ns_and_b32 s30, s20, 1\ns_lshl_b32 s30, s30, 7\ns_add_u32 s27, s27, s30\ns_add_u32 s27, s27, 256')
        a('s_cmp_ge_u32 s20, 2\ns_cbranch_scc1 P_t1')
        a('buffer_load_dword v240, v13, s[8:11], s27 offen\ns_branch P_t2')
        a.label('P_t1')
        a('buffer_load_dword v240, v13, s[12:15], s27 offen')
        a.label('P_t2')
    for b in range(2):
        for k in range(2):
            a('v_add_u32 v%d, %d, v%d\nv_add_u32 v%d, s35, v%d' % (220 + 2 * b + k, b * 65536, 228 + k, 224 + 2 * b + k, 220 + 2 * b + k))
    quad = lambda k, i: 128 + 4 * (k * 11 + i)
    for q in range(4):
        a('s_waitcnt vmcnt(%d)\ns_barrier' % ((16 + touch if q < 2 else 16) if q < 3 else 0))
        if rt and q == opts.get('rtks', 0): a('s_memrealtime s[66:67]\ns_waitcnt lgkmcnt(0)')
        for k in range(2):
            for i in range(11):
                a('ds_read_b128 %s, v%d offset:%d' % (vr(quad(k, i), 4), (220 if i < 4 else 224) + 2 * (q % 2) + k, (i if i < 4 else i - 4) * 2048))
            if k == 0: a('s_waitcnt lgkmcnt(4)')
        for k in range(2):
            if k == 0: a('s_waitcnt lgkmcnt(11)')
            elif q + 2 < 4:
                a('s_waitcnt lgkmcnt(0)\ns_barrier')
                loadsA(q + 2)
            else: a('s_waitcnt lgkmcnt(0)')
            for mu in range(4):
                for t in range(7):
                    a('v_mfma_f32_16x16x32_bf16 %s, %s, %s, %s' % (vr(ACC(mu, t), 4), vr(quad(k, mu), 4), vr(quad(k, 4 + t), 4), '0' if q + k == 0 else vr(ACC(mu, t), 4)))
    epilogue(True)
    a.label('P_bjob')
    srd(a, 8, 44, WSZ)
    srd(a, 12, 46, WSZ)
    a('s_add_u32 s32, s32, 0x%x' % BFR)
    a('s_movk_i32 s27, 4682')
    for i in range(7):
        a('v_add_u32 v13, %d, v1' % (64 * i))
        a('v_mul_u32_u24 v14, s27, v13\nv_lshrrev_b32 v14, 16, v14')
        a('v_mul_u32_u24 v15, 14, v14\nv_sub_u32 v15, v13, v15')
        a('v_mul_u32_u24 v14, 0x380, v14\nv_lshl_add_u32 v%d, v15, 4, v14' % (230 + i))
    a('s_mul_i32 s26, s25, 229376\ns_mul_i32 s27, s20, 224\ns_add_u32 s26, s26, s27')
    a('s_mul_i32 s35, s20, 28672\ns_add_u32 s35, s35, 32768')
    a('v_bfe_u32 v13, v1, 2, 2\nv_lshl_add_u32 v13, v11, 3, v13\nv_mul_u32_u24 v13, 224, v13')
    a('v_and_b32 v14, 3, v1\nv_lshl_add_u32 v13, v14, 3, v13\nv_add_u32 v13, s35, v13')
    def loadsB(ks):
        slot = ks % 4
        for i in range(7):
            a('s_add_u32 m0, s35, %d' % (slot * 7168 + i * 1024))
            a('s_nop 0')
            a('buffer_load_dwordx4 v%d, s[12:15], s26 offen lds' % (230 + i))
        a('s_add_u32 s26, s26, %d' % (32 * 896))
    for q in range(4):
        for hf in range(2):
            a('s_add_u32 m0, s29, %d\ns_add_u32 s27, s28, %d' % (q * 8192 + hf * 1024, q * 128))
            a('buffer_load_dwordx4 v%d, s[8:11], s27 offen lds' % (2 + hf))
    for ks in range(4): loadsB(ks)
    if rt and opts.get('rtks', 0) == 4: a('s_memrealtime s[66:67]\ns_waitcnt lgkmcnt(0)')
    if touch:
        a('s_mul_i32 s27, s25, 229376\ns_lshl_b32 s30, s24, 14\ns_add_u32 s27, s27, s30\ns_lshl_b32 s30, s20, 12\ns_add_u32 s27, s27, s30\ns_add_u32 s27, s27, 114688')
        a('v_lshlrev_b32 v14, 6, v1\nbuffer_load_dword v240, v14, s[12:15], s27 offen')
    a('s_waitcnt vmcnt(%d)\ns_barrier' % (28 + touch))
    for ks in range(8):
        for mu in range(4):
            a('ds_read_b128 %s, v%d offset:%d' % (ar(4 * (ks * 4 + mu), 4), 228 + ks % 2, (ks // 2) * 8192 + mu * 2048))
        if ks % 2 == 1: a('s_waitcnt lgkmcnt(4)')
    for ks in range(8):
        a('s_waitcnt vmcnt(%d)' % (7 * (min(8, 4 + ks) - ks - 1) + (touch if ks < 4 else 0)))
        if rt and ks == 2 * opts.get('rtks', 0) + 1: a('s_memrealtime s[66:67]\ns_waitcnt lgkmcnt(0)')
        bo = 128 + 28 * (ks % 2)
        for t in range(7):
            off = (ks % 4) * 7168 + 32 * t
            a('ds_read_b64_tr_b16 %s, v13 offset:%d' % (vr(bo + 4 * t, 2), off))
            a('ds_read_b64_tr_b16 %s, v13 offset:%d' % (vr(bo + 4 * t + 2, 2), off + 896))
        a('s_waitcnt lgkmcnt(0)')
        if ks + 4 < 8: loadsB(ks + 4)
        for t in range(7):
            for mu in range(4):
                a('v_mfma_f32_16x16x32_bf16 %s, %s, %s, %s' % (vr(ACC(mu, t), 4), ar(4 * (ks * 4 + mu), 4), vr(bo + 4 * t, 4), '0' if ks == 0 else vr(ACC(mu, t), 4)))
    epilogue(False)
    a.label('P_ln')
    srd(a, 8, 36, XSZ)
    a('s_lshl_b32 s23, s21, 2\ns_add_u32 s23, s23, s22\ns_sub_u32 s23, s23, 28')
    a('s_lshl_b32 s24, s23, 2\ns_add_u32 s24, s24, s20')
    a('v_and_b32 v10, 15, v1\nv_lshrrev_b32 v11, 4, v1')
    srd(a, 52, 38, 7168)
    a('v_and_b32 v13, 7, v1\nv_mul_u32_u24 v13, 0x380, v13\nv_bfe_u32 v14, v1, 3, 1\nv_lshl_add_u32 v13, v14, 6, v13\nv_lshl_add_u32 v13, v11, 4, v13')
    for kk in range(7):
        a('buffer_load_dwordx4 %s, v13, s[52:55], 0 offen offset:%d' % (ar(4 * kk, 4), 128 * kk))
    a('s_mul_i32 s25, s24, %d\ns_mul_i32 s35, s20, 14336\ns_movk_i32 s27, 1171' % (16 * 896))
    for j in range(14):
        a('v_add_u32 v13, %d, v1\nv_mul_u32_u24 v14, s27, v13\nv_lshrrev_b32 v14, 17, v14' % (64 * j))
        a('s_add_u32 m0, s35, %d' % (j * 1024))
        a('v_and_b32 v14, 7, v14\nv_xor_b32 v13, v13, v14\nv_lshlrev_b32 v13, 4, v13')
        a('buffer_load_dwordx4 v13, s[8:11], s25 offen lds')
    a('v_mul_u32_u24 v2, 0x380, v10\nv_add_u32 v2, s35, v2\nv_lshrrev_b32 v13, 1, v10')
    a('v_xor_b32 v14, v13, v11\nv_lshl_add_u32 v248, v14, 4, v2\nv_xor_b32 v14, 4, v14\nv_lshl_add_u32 v249, v14, 4, v2')
    a('v_and_b32 v14, 1, v11\nv_lshl_add_u32 v2, v14, 3, v2\nv_lshrrev_b32 v14, 1, v11\nv_xor_b32 v13, v13, v14')
    for k in range(4):
        a('v_xor_b32 v14, %d, v13\nv_lshl_add_u32 v%d, v14, 4, v2' % (2 * k, 250 + k))
    a('s_lshl_b32 s26, s23, 12\nv_lshlrev_b32 v3, 4, v0\nv_add_u32 v3, s26, v3')
    for r in range(4):
        a('v_mov_b32 v%d, -1\nv_mov_b32 v%d, 0' % (4 + r, 12 + r))
    for (base, size) in ((MEMC + 7168, MEMSZ - 7168), (MEMX + 7168, MEMSZ - 7168), (PC, PCSZ)):
        srd(a, 12, 48, size, base)
        for p in range((size + 131071) // 131072):
            a('s_mov_b32 s26, 0x%x' % (p * 131072))
            a('buffer_store_dwordx4 v[4:7], v3, s[12:15], s26 offen')
    srd(a, 12, 48, FLGSZ, FLG)
    a('buffer_store_dwordx4 v[12:15], v3, s[12:15], 0 offen')
    nfill = 4 + 4 + 5 + 1
    a('s_waitcnt vmcnt(%d)' % nfill)
    if rt: a('s_memrealtime s[66:67]')
    for i in range(28):
        a('ds_read_b64 %s, v%d offset:%d' % (vr(16 + 2 * i, 2), 250 + i % 4, (i // 4) * 128))
        if i % 8 == 7: a('s_waitcnt lgkmcnt(4)')
    a('s_waitcnt lgkmcnt(0)')
    X = lambda i: 80 + i
    for i in range(56):
        a('v_lshlrev_b32 v%d, 16, v%d' % (X(2 * i), 16 + i))
        a('v_and_b32 v%d, 0xffff0000, v%d' % (X(2 * i + 1), 16 + i))
    def rowsum(dst):
        a('v_mov_b32 v73, v%d\ns_nop 1\nv_permlane16_swap_b32 v73, v%d\nv_add_f32 v%d, v%d, v73' % (dst, dst, dst, dst))
        a('v_mov_b32 v73, v%d\ns_nop 1\nv_permlane32_swap_b32 v73, v%d\nv_add_f32 v%d, v%d, v73' % (dst, dst, dst, dst))
    def bfround(r):
        a('v_cvt_pk_bf16_f32 v%d, v%d, v%d\nv_lshlrev_b32 v%d, 16, v%d' % (r, r, r, r, r))
    for k in range(4):
        a('v_add_f32 v%d, v%d, v%d' % (74 + k, X(k), X(k + 4)))
    for i in range(8, 112):
        a('v_add_f32 v%d, v%d, v%d' % (74 + i % 4, 74 + i % 4, X(i)))
    a('v_add_f32 v74, v74, v75\nv_add_f32 v76, v76, v77\nv_add_f32 v72, v74, v76')
    rowsum(72)
    a('v_mul_f32 v72, 0x%x, v72' % f2u(1.0 / 448))
    for k in range(4):
        a('v_mov_b32 v%d, 0' % (74 + k))
    for i in range(112):
        a('v_sub_f32 v%d, v%d, v72\nv_fmac_f32 v%d, v%d, v%d' % (78 + i % 2, X(i), 74 + i % 4, 78 + i % 2, 78 + i % 2))
    a('v_add_f32 v74, v74, v75\nv_add_f32 v76, v76, v77\nv_add_f32 v74, v74, v76')
    rowsum(74)
    a('v_mul_f32 v74, 0x%x, v74' % f2u(1.0 / 448))
    bfround(74)
    a('v_add_f32 v74, 0x%x, v74' % f2u(1e-5))
    bfround(74)
    a('v_sqrt_f32 v74, v74\ns_nop 0')
    bfround(74)
    a('v_rcp_f32 v74, v74')
    bfround(72)
    for i in range(56):
        x0, x1 = X(2 * i), X(2 * i + 1)
        a('v_sub_f32 v%d, v%d, v72\nv_sub_f32 v%d, v%d, v72' % (x0, x0, x1, x1))
        a('v_cvt_pk_bf16_f32 v78, v%d, v%d' % (x0, x1))
        a('v_lshlrev_b32 v%d, 16, v78\nv_and_b32 v%d, 0xffff0000, v78' % (x0, x1))
        a('v_mul_f32 v%d, v74, v%d\nv_mul_f32 v%d, v74, v%d' % (x0, x0, x1, x1))
        a('v_cvt_pk_bf16_f32 v%d, v%d, v%d' % (16 + i, x0, x1))
    if rt: a('s_memrealtime s[64:65]')
    for i in range(28):
        a('ds_write_b64 v%d, %s offset:%d' % (250 + i % 4, vr(16 + 2 * i, 2), (i // 4) * 128))
        if i % 8 == 7: a('s_waitcnt lgkmcnt(4)')
    a('s_waitcnt lgkmcnt(0)')
    for i in range(14):
        a('ds_read_b128 %s, v%d offset:%d' % (vr(80 + 4 * i, 4), 248 + i % 2, (i // 2) * 128))
    for ks in range(14):
        kk, aa = ks // 2, ks % 2
        for q in range(4):
            mu = aa + 2 * (q & 1)
            a('v_mov_b32 v%d, v%d' % (192 + 4 * ks + q, 16 + 2 * (4 * kk + mu) + (q >> 1)))
    a('v_lshlrev_b32 v12, 4, v1')
    a('s_mul_i32 s26, s24, 14336\ns_add_u32 s26, s26, 0x%x' % XP)
    for ks in range(14):
        if ks and ks % 4 == 0:
            a('s_add_u32 s26, s26, 4096')
        a('buffer_store_dwordx4 %s, v12, s[4:7], s26 offen offset:%d' % (vr(192 + 4 * ks, 4), (ks % 4) * 1024))
    a('v_lshrrev_b32 v13, 1, v11\nv_and_b32 v14, 1, v11\nv_lshlrev_b32 v14, 9, v14\nv_lshl_add_u32 v14, v10, 4, v14\nv_lshl_add_u32 v14, v13, 10, v14')
    a('s_lshr_b32 s26, s24, 1\ns_lshl_b32 s26, s26, 15\ns_and_b32 s27, s24, 1\ns_lshl_b32 s27, s27, 11\ns_add_u32 s26, s26, s27\ns_add_u32 s26, s26, 0x%x' % XK)
    a('s_waitcnt lgkmcnt(0)')
    for i in range(14):
        if i < 8: dst = [((i // 2) * 8192 + (i % 2) * 1024, 12)]
        elif i < 12: dst = [((i - 8) * 8192 + 4096, 14)]
        else: dst = [((2 * (i - 12) + k) * 8192 + 4096 + 256, 14) for k in range(2)]
        for off, vreg in dst:
            a('s_add_u32 s27, s26, %d' % off)
            a('buffer_store_dwordx4 %s, v%d, s[4:7], s27 offen' % (vr(80 + 4 * i, 4), vreg))
    a('s_cmp_lg_u32 s24, 0\ns_cbranch_scc1 P_end')
    for i in range(28):
        a('v_accvgpr_read_b32 v%d, a%d\nv_min_u32 v%d, -2, v%d' % (140 + i, i, 140 + i, 140 + i))
    for base in (MEMC, MEMX):
        for kk in range(7):
            a('s_mov_b32 s26, 0x%x' % (base + kk * 1024))
            a('buffer_store_dwordx4 %s, v12, s[4:7], s26 offen' % vr(140 + 4 * kk, 4))
    a.label('P_end')
    end()
    a.label('P_end2')
    a('s_endpgm')
```

```python
from asm import *
from layout import *
from prep import srd, f2u

LOG2E = 1.4426950408889634
ACC = lambda t, mt: 4 * (2 * t + mt)
XS = lambda b, mt: 56 + 8 * b + 4 * mt
VL, VX = 104, 105

def mfma(a, d, x, y, c=None):
    a('v_mfma_f32_16x16x32_bf16 %s, %s, %s, %s' % (R(d, 4), R(x, 4), R(y, 4), '0' if c is None else R(c, 4)))

def idx14(a, dst0, n, rowbytes):
    a('s_movk_i32 s27, 4682')
    for i in range(n):
        a('v_add_u32 v2, %d, v1' % (64 * i))
        a('v_mul_u32_u24 v3, s27, v2\nv_lshrrev_b32 v3, 16, v3')
        a('v_mul_u32_u24 v4, 14, v3\nv_sub_u32 v4, v2, v4')
        a('v_mul_u32_u24 v3, %d, v3\nv_lshl_add_u32 v%d, v4, 4, v3' % (rowbytes, dst0 + i))

def dma_x(a):
    a('s_mov_b32 m0, s28\ns_add_u32 s63, s27, 4096')
    for i in range(4):
        a('buffer_load_dwordx4 v%d, s[4:7], s27 offen offset:%d lds' % (VL, i * 1024))
    a('s_add_u32 m0, s28, 4096\ns_nop 0')
    for i in range(3):
        a('buffer_load_dwordx4 v%d, s[4:7], s63 offen offset:%d lds' % (VL, i * 1024))

def gemm_setup(a, flag0):
    a('s_mul_i32 s27, s24, 28672\ns_mul_i32 s28, s20, 7168\ns_add_u32 s27, s27, s28\ns_add_u32 s27, s27, 0x%x' % XP)
    dma_x(a)
    a('v_mov_b32 v%d, v%d' % (VX, VL))
    a('s_lshl_b32 s30, s24, 6\ns_add_u32 s30, s30, s%d\ns_mov_b32 s31, 0x%x' % (flag0, FLG_M))

def gemm_loop(c, name, step, wA, epilogue, done='M_exit'):
    from mainker import WREG
    a = c.a
    c.rt(2)
    a.label(name + '_top')
    a('s_waitcnt vmcnt(0)\ns_barrier')
    a('s_cmp_lg_u32 s20, 0\ns_cbranch_scc1 %s_nf' % name)
    a('v_mov_b32 v56, 1\ns_mov_b64 exec, 1\nbuffer_store_dword v56, off, s[4:7], s31 sc1\ns_mov_b64 exec, -1')
    a.label(name + '_nf')
    a('s_cmp_ge_u32 s24, 64\ns_cbranch_scc1 %s' % done)
    a('s_add_u32 s27, s27, %d\ns_xor_b32 s28, s28, 32768' % (28672 * step))
    a('s_cmp_ge_u32 s24, %d\ns_cbranch_scc1 %s_nd' % (64 - step, name))
    dma_x(a)
    a.label(name + '_nd')
    def rd(ks):
        for mt in range(2):
            a('ds_read_b128 %s, v%d offset:%d' % (vr(XS(ks % 2, mt), 4), VX, (mt * 14 + ks) * 1024))
    rd(0)
    for ks in range(14):
        if ks < 13: rd(ks + 1)
        a('s_waitcnt lgkmcnt(%d)' % (2 if ks < 13 else 0))
        for t in range(7):
            for mt in range(2):
                wr = WREG(t * 7 + ks // 2) + 4 * (ks % 2)
                x = XS(ks % 2, mt)
                mfma(a, ACC(t, mt), wr if wA else x, x if wA else wr, None if ks == 0 else ACC(t, mt))
    a('v_xor_b32 v%d, 32768, v%d\ns_nop 6' % (VX, VX))
    epilogue()
    a('s_mov_b32 s31, s30\ns_add_u32 s30, s30, %d\ns_add_u32 s24, s24, %d' % (64 * step, step))
    a('s_branch %s_top' % name)

def gen_RU(c):
    from mainker import WREG, load_weights, cvt
    a = c.a
    a.label('RU_role')
    a('s_lshr_b32 s25, s22, 2\ns_and_b32 s24, s22, 3')
    a('s_lshl_b32 s26, s25, 2\ns_add_u32 s26, s26, 0x%x' % FLG_U)
    gemm_setup(a, 26)
    a('s_mul_i32 s26, s25, 0x%x\ns_mul_i32 s29, s20, %d\ns_add_u32 s26, s26, s29\ns_add_u32 s26, s26, 0x%x' % (MAT, 49 * 2048, BFR))
    load_weights(a, [(WREG(b), b * 2048) for b in range(49)], 26, VL)
    a('s_mul_i32 s29, s24, 0x%x\ns_mul_i32 s32, s25, 28672\ns_add_u32 s29, s29, s32\ns_mul_i32 s32, s20, 7168\ns_add_u32 s29, s29, s32\ns_add_u32 s29, s29, 0x%x' % (USEG, UB))
    def epi():
        a('s_add_u32 s32, s29, 4096')
        for t in range(7):
            o = 72 + 4 * t
            for q in range(4):
                s = ACC(t, q // 2) + 2 * (q % 2)
                cvt(a, o + q, s, s + 1)
            a('buffer_store_dwordx4 %s, v%d, s[4:7], s%d offen offset:%d sc1' % (vr(o, 4), VL, 29 if t < 4 else 32, (t % 4) * 1024))
        a('s_add_u32 s29, s29, 0x%x' % (4 * USEG))
    gemm_loop(c, 'RU', 4, False, epi, 'RV_role')
    from mainker import smf, OOB
    M = lambda k: 28 + 4 * k
    IDX, VA0, VA1, TMP = 106, 107, 108, 109
    a.label('RV_role')
    if c.opts.get('bare', 0): a('s_branch M_exit')
    c.rt(1)
    a('v_lshrrev_b32 v1, 4, v%d' % VL)
    a('v_bfe_u32 v3, v1, 3, 1\nv_mov_b32 v4, 0x4444\nv_mov_b32 v5, 0xeeee\nv_cmp_eq_u32 vcc, 1, v3\ns_nop 1\nv_cndmask_b32 v%d, v4, v5, vcc' % IDX)
    a('s_and_b32 s32, s25, 1\ns_lshl_b32 s32, s32, 9\ns_bfe_u32 s33, s25, 0x10001\ns_lshl_b32 s33, s33, 3\ns_add_u32 s32, s32, s33')
    a('v_and_b32 v2, 31, v1\nv_lshl_add_u32 v2, v2, 4, s32\nv_add_u32 v3, 1024, v2\nv_mov_b32 v4, 0x%x\nv_cmp_gt_u32 vcc, 32, v1' % OOB)
    a('s_nop 1\nv_cndmask_b32 v%d, v3, v2, vcc\nv_cndmask_b32 v%d, v4, v2, vcc' % (VA0, VA1))
    a('s_and_b32 s24, s22, 3')
    a('s_mul_i32 s26, s24, 7168\ns_add_u32 s26, s26, 0x%x' % MEMX)
    a('s_mul_i32 s29, s24, 0x%x\ns_lshr_b32 s32, s25, 2\ns_mul_i32 s32, s32, 28672\ns_add_u32 s29, s29, s32\ns_mul_i32 s32, s20, 7168\ns_add_u32 s29, s29, s32\ns_add_u32 s29, s29, 0x%x' % (VMSEG, VM))
    a('s_lshl_b32 s30, s24, 6\ns_lshl_b32 s32, s25, 2\ns_add_u32 s30, s30, s32\ns_add_u32 s30, s30, 0x%x' % FLG_V)
    a.label('RV_top')
    for r in range(28): a('v_mov_b32 v%d, 0' % r)
    a('s_add_u32 s27, s26, 4096\ns_add_u32 s32, s29, 4096')
    l = c.spin_head('RVm0')
    a('buffer_load_dword v%d, off, s[4:7], s26 sc1\ns_waitcnt vmcnt(0)\nv_cmp_eq_u32 vcc, -1, v%d\ns_cbranch_vccnz %s' % (TMP, TMP, l))
    c.poll('RVm1', ['buffer_load_dwordx4 %s, v%d, s[4:7], s%d offen offset:%d sc1' % (vr(M(k), 4), VL, 26 + k // 4, (k % 4) * 1024) for k in range(7)],
           list(range(M(0), M(7))), TMP, 1)
    def post(pr):
        x, y, o = 8 * pr, 8 * pr + 4, 56 + 2 * pr
        if pr == 3:
            y = 64
            for r in range(4): a('v_mov_b32 v%d, v%d' % (y + r, x + r))
            a('s_nop 0')
        for r in range(4): a('v_permlane32_swap_b32 v%d, v%d' % (x + r, y + r))
        for r in range(4): a('v_add_f32 v%d, v%d, v%d' % (x + r, x + r, y + r))
        cvt(a, o, x, x + 1); cvt(a, o + 1, x + 2, x + 3)
        a('buffer_store_dwordx2 %s, v%d, s[4:7], s%d offen offset:%d sc1' % (vr(o, 2), VA1 if pr == 3 else VA0, 29 if pr < 2 else 32, (pr % 2) * 2048))
    for t in range(7):
        for k in range(7):
            smf(a, 4 * t, M(k), WREG(t * 7 + k), IDX)
            if k == 2 and t in (2, 4, 6): post(t // 2 - 1)
    a('s_nop 7')
    post(3)
    a('s_waitcnt vmcnt(0)\ns_barrier')
    a('s_cmp_lg_u32 s20, 0\ns_cbranch_scc1 RV_nf')
    a('s_mov_b64 exec, 1\nbuffer_store_dword v%d, off, s[4:7], s30 sc1\ns_mov_b64 exec, -1' % IDX)
    a.label('RV_nf')
    a('s_add_u32 s26, s26, %d\ns_add_u32 s29, s29, 0x%x\ns_add_u32 s30, s30, 256' % (4 * 7168, 4 * VMSEG))
    a('s_add_u32 s24, s24, 4\ns_cmp_lt_u32 s24, 64\ns_cbranch_scc1 RV_top')
    c.end()

def gen_RH(c):
    from mainker import WREG, cvt
    a = c.a
    a.label('RH_role')
    if c.opts.get('bare', 0): a('s_branch M_exit')
    a('s_sub_u32 s22, s22, 128\ns_lshr_b32 s25, s22, 3\ns_and_b32 s24, s22, 7')
    srd(a, 8, 40, 448 * 1792 * 2)
    idx14(a, 6, 14, 3584)
    a('s_mul_i32 s26, s25, 896\ns_mul_i32 s27, s20, 224\ns_add_u32 s26, s26, s27')
    a('s_mul_i32 s35, s20, 28672')
    a('v_lshrrev_b32 v2, 4, v1\nv_bfe_u32 v3, v1, 2, 1\nv_lshl_add_u32 v2, v2, 2, v3\nv_bfe_u32 v3, v1, 3, 1\nv_lshl_add_u32 v2, v3, 5, v2')
    a('v_mul_u32_u24 v2, 224, v2\nv_and_b32 v3, 3, v1\nv_lshl_add_u32 v2, v3, 3, v2\nv_add_u32 v5, s35, v2')
    def ld(kk):
        for i in range(14):
            a('s_add_u32 m0, s35, %d\ns_nop 0' % ((kk % 2) * 14336 + i * 1024))
            a('buffer_load_dwordx4 v%d, s[8:11], s26 offen lds' % (6 + i))
        a('s_add_u32 s26, s26, %d' % (64 * 3584))
    ld(0); ld(1)
    for kk in range(7):
        a('s_waitcnt vmcnt(%d)' % (14 if kk < 6 else 0))
        for t in range(7):
            for q in range(4):
                a('ds_read_b64_tr_b16 %s, v5 offset:%d' % (R(WREG(t * 7 + kk) + 2 * q, 2), (kk % 2) * 14336 + (16 * (q // 2) + 2 * (q % 2)) * 224 + 32 * t))
            if t % 2 == 1: a('s_waitcnt lgkmcnt(4)')
        a('s_waitcnt lgkmcnt(0)')
        if kk + 2 < 7: ld(kk + 2)
    a('s_barrier')
    a('s_lshl_b32 s26, s25, 2\ns_add_u32 s26, s26, 0x%x' % FLG_H)
    gemm_setup(a, 26)
    a('s_mul_i32 s29, s24, 0x%x\ns_mul_i32 s32, s25, 28672\ns_add_u32 s29, s29, s32\ns_add_u32 s29, s29, 0x%x' % (HSEG, HB))
    a('s_mul_i32 s33, s20, 3072')
    a('s_lshr_b32 s34, s20, 1\ns_lshl_b32 s34, s34, 10\ns_and_b32 s32, s20, 1\ns_lshl_b32 s32, s32, 3\ns_add_u32 s34, s34, s32\ns_add_u32 s34, s34, 12288')
    a('s_mov_b32 s35, 0x%x' % f2u(-LOG2E))
    def epi():
        for mt in range(2):
            a('s_add_u32 s32, s29, s33\ns_add_u32 s26, s29, s34')
            for t in range(7):
                s = ACC(t, mt); tm = 56 + 4 * (t % 2)
                for r in range(4): a('v_mul_f32 v%d, s35, v%d' % (tm + r, s + r))
                for r in range(4): a('v_exp_f32 v%d, v%d' % (tm + r, tm + r))
                for r in range(4): a('v_add_f32 v%d, 1.0, v%d' % (tm + r, tm + r))
                for r in range(4): a('v_rcp_f32 v%d, v%d' % (tm + r, tm + r))
                for r in range(4): a('v_mul_f32 v%d, v%d, v%d' % (s + r, s + r, tm + r))
                o = 72 + 16 * mt + 2 * t
                cvt(a, o, s, s + 1); cvt(a, o + 1, s + 2, s + 3)
                if t % 2 == 1:
                    a('buffer_store_dwordx4 %s, v%d, s[4:7], s32 offen offset:%d sc1' % (vr(o - 2, 4), VL, (t // 2) * 1024))
                elif t == 6:
                    a('buffer_store_dwordx2 %s, v%d, s[4:7], s26 offen sc1' % (vr(o, 2), VL))
            a('s_add_u32 s29, s29, 0x%x' % (14336 if mt == 0 else 8 * HSEG - 14336))
    gemm_loop(c, 'RH', 8, True, epi)

def gen_RT(c):
    from mainker import WREG, load_weights, cvt, NEGBIG, OOB
    a = c.a
    VKX, VKM, VPM, VNG, VSB, TMP = 106, 109, 112, 113, 114, 115
    TP = lambda mt, sg: 72 + 16 * mt + 4 * sg
    KX = lambda tau, sg: 16 * tau + 4 * sg
    KM = lambda sg: 32 + 4 * sg
    SA = lambda tile, mt: 48 + 8 * tile + 4 * mt
    SB = 65536
    a.label('RT_role')
    if c.opts.get('bare', 0): a('s_branch M_exit')
    a('s_sub_u32 s22, s22, 64\ns_lshr_b32 s25, s22, 2\ns_and_b32 s24, s22, 3')
    a('s_lshl_b32 s26, s25, 2\ns_add_u32 s26, s26, 0x%x' % FLG_P)
    gemm_setup(a, 26)
    a('s_mul_i32 s26, s25, 0x%x\ns_mul_i32 s29, s20, %d\ns_add_u32 s26, s26, s29\ns_add_u32 s26, s26, 0x%x' % (MAT, 49 * 2048, AFR))
    load_weights(a, [(WREG(b), b * 2048) for b in range(49)], 26, VL)
    a('v_and_b32 v2, 15, v1\nv_lshrrev_b32 v3, 4, v1\nv_and_b32 v4, 7, v1')
    a('v_lshrrev_b32 v5, 1, v3\nv_and_b32 v6, 1, v3\nv_lshlrev_b32 v6, 9, v6\nv_lshl_add_u32 v6, v5, 10, v6\nv_lshl_add_u32 v%d, v2, 4, v6' % VKX)
    a('s_lshr_b32 s33, s20, 1')
    a('v_lshlrev_b32 v5, 4, v4\nv_and_b32 v6, 1, v3\nv_lshl_add_u32 v6, v6, 9, v5\nv_lshrrev_b32 v7, 1, v3\nv_lshl_add_u32 v6, v7, 7, v6')
    a('s_lshl_b32 s32, s20, 10\nv_add_u32 v%d, s32, v6' % VKM)
    a('v_lshl_add_u32 v5, v3, 8, v5')
    a('s_and_b32 s34, s20, 1\ns_lshl_b32 s32, s33, 10\ns_lshl_b32 s35, s34, 7\ns_add_u32 s32, s32, s35\ns_add_u32 s32, s32, 4096\nv_add_u32 v%d, s32, v5' % (VKM + 1))
    a('s_lshl_b32 s32, s33, 7\ns_add_u32 s32, s32, 6144\nv_add_u32 v%d, s32, v5' % (VKM + 2))
    a('s_sub_u32 s50, s34, 1\ns_not_b32 s51, s50')
    a('s_lshl_b32 s32, s20, 4\nv_lshlrev_b32 v5, 2, v3\nv_sub_u32 v5, v2, v5\nv_add_u32 v%d, s32, v5' % VNG)
    a('s_lshr_b32 s32, s25, 2\ns_lshl_b32 s32, s32, 1\ns_add_u32 s32, s32, s20\ns_lshl_b32 s32, s32, 10\ns_add_u32 s32, s32, 32768')
    a('s_and_b32 s33, s25, 1\ns_lshl_b32 s33, s33, 9\ns_add_u32 s32, s32, s33\ns_bfe_u32 s33, s25, 0x10001\ns_lshl_b32 s33, s33, 3\ns_add_u32 s32, s32, s33')
    a('v_add_u32 v5, s32, v%d\nv_mov_b32 v6, 0x%x\nv_cmp_gt_u32 s[52:53], 32, v1\ns_nop 1\nv_cndmask_b32 v%d, v6, v5, s[52:53]' % (VL, OOB, VPM))
    a('s_mul_i32 s32, s20, 6144\ns_add_u32 s32, s32, %d\nv_add_u32 v%d, s32, v%d' % (SB, VSB, VL))
    a('s_lshl_b32 s32, s20, 10\ns_add_u32 s32, s32, %d\nv_add_u32 v116, s32, v%d' % (SB, VL))
    VSR = 116
    a('s_lshl_b32 s29, s24, 15\ns_lshl_b32 s32, s20, 13\ns_add_u32 s29, s29, s32\ns_add_u32 s29, s29, 0x%x' % XK)
    a('s_mul_i32 s33, s24, 7168\ns_add_u32 s33, s33, 0x%x' % MEMX)
    a('s_mul_i32 s34, s24, 40960\ns_add_u32 s34, s34, 0x%x' % PX)
    a('s_lshl_b32 s54, s25, 1\ns_add_u32 s54, s54, s20\ns_lshl_b32 s54, s54, 10')
    a('s_mov_b32 s55, 0x%x' % NEGBIG)
    def epi():
        for mt in range(2):
            for sg in range(3):
                for q in range(4):
                    s = ACC(2 * sg + q % 2, mt) + 2 * (q // 2)
                    cvt(a, TP(mt, sg) + q, s, s + 1)
            for hf in range(2):
                s = ACC(6, mt) + 2 * hf; o = TP(mt, 3) + 2 * hf
                cvt(a, o, s, s + 1)
                a('v_and_b32 v%d, s51, v%d\nv_and_b32 v%d, s50, v%d' % (o + 1, o, o, o))
        a('s_add_u32 s32, s29, 4096')
        for tau in range(2):
            for sg in range(4):
                a('buffer_load_dwordx4 %s, v%d, s[4:7], s%d offen offset:%d' % (vr(KX(tau, sg), 4), VKX, 32 if sg >= 2 else 29, tau * 2048 + (sg % 2) * 256))
        for tau in range(2):
            for sg in range(4):
                a('s_waitcnt vmcnt(%d)' % (7 - 4 * tau - sg))
                for mt in range(2):
                    if tau <= mt:
                        mfma(a, SA(tau, mt), KX(tau, sg), TP(mt, sg), None if sg == 0 else SA(tau, mt))
        a('s_nop 4')
        for (tau, mt) in ((0, 0), (0, 1), (1, 1)):
            if tau == 1: a('s_nop 2')
            a('ds_write_b128 v%d, %s offset:%d' % (VSB, vr(SA(tau, mt), 4), (tau * 2 + mt) * 1024))
        a('s_waitcnt lgkmcnt(0)\ns_barrier')
        a('s_cmp_ge_u32 s20, 2\ns_cbranch_scc1 RT_p1')
        for tau in range(2):
            for p in range(4):
                a('ds_read_b128 %s, v%d offset:%d' % (vr(16 * tau + 4 * p, 4), VSR, p * 6144 + tau * 2048))
        for tau in range(2):
            a('s_waitcnt lgkmcnt(%d)' % (4 - 4 * tau))
            for r in range(4):
                b = 16 * tau + r
                a('v_add_f32 v%d, v%d, v%d\nv_add_f32 v%d, v%d, v%d\nv_add_f32 v%d, v%d, v%d' % (b, b, b + 4, b + 8, b + 8, b + 12, b, b, b + 8))
                a('v_cmp_le_i32 vcc, %d, v%d\nv_mov_b32 v%d, s55\ns_nop 0\nv_cndmask_b32 v%d, v%d, v%d, vcc' % (16 * tau + r, VNG, b + 4, 8 * tau + r, b + 4, b))
        a('v_max3_f32 v4, v0, v1, v2\nv_max3_f32 v4, v4, v3, v8\nv_max3_f32 v4, v4, v9, v10\nv_max_f32 v4, v4, v11')
        a.label('RT_p1')
        l = c.spin_head('RTm0')
        a('buffer_load_dword v%d, off, s[4:7], s33 sc1\ns_waitcnt vmcnt(0)\nv_cmp_eq_u32 vcc, -1, v%d\ns_cbranch_vccnz %s' % (TMP, TMP, l))
        l = c.spin_head('RTm1')
        for sg in range(4):
            a('buffer_load_dwordx4 %s, v%d, s[4:7], s33 offen offset:%d sc1' % (vr(KM(sg), 4), VKM + max(0, sg - 1), 256 if sg == 1 else 0))
        a('s_waitcnt vmcnt(0)')
        c.check_poison(list(range(KM(0), KM(0) + 16)), TMP)
        a('s_cbranch_vccnz %s' % l)
        for sg in range(4):
            for mt in range(2):
                mfma(a, SA(2, mt), KM(sg), TP(mt, sg), None if sg == 0 else SA(2, mt))
        a('s_nop 4')
        a('ds_write_b128 v%d, %s offset:4096\ns_nop 2\nds_write_b128 v%d, %s offset:5120' % (VSB, vr(SA(2, 0), 4), VSB, vr(SA(2, 1), 4)))
        a('s_waitcnt lgkmcnt(0)\ns_barrier')
        a('s_cmp_ge_u32 s20, 2\ns_cbranch_scc1 RT_p2')
        for p in range(4):
            a('ds_read_b128 %s, v%d offset:%d' % (vr(16 + 4 * p, 4), VSR, p * 6144 + 4096))
        a('v_mov_b32 v5, 0xff800000\ns_waitcnt lgkmcnt(0)')
        for r in range(4):
            b = 16 + r
            a('v_add_f32 v%d, v%d, v%d\nv_add_f32 v%d, v%d, v%d\nv_add_f32 v%d, v%d, v%d' % (b, b, b + 4, b + 8, b + 8, b + 12, b, b, b + 8))
            a('v_cndmask_b32 v%d, v5, v%d, s[52:53]' % (12 + r, b))
        a('v_max3_f32 v4, v4, v12, v13\nv_max3_f32 v4, v4, v14, v15')
        def allg(op, r, tmp):
            for sw in ('16', '32'):
                a('v_mov_b32 v%d, v%d\ns_nop 1\nv_permlane%s_swap_b32 v%d, v%d\n%s v%d, v%d, v%d' % (tmp, r, sw, tmp, r, op, r, r, tmp))
        allg('v_max_f32', 4, 5)
        regs = [0, 1, 2, 3, 8, 9, 10, 11, 12, 13, 14, 15]
        for r in regs: a('v_sub_f32 v%d, v%d, v4' % (r, r))
        for r in regs: a('v_exp_f32 v%d, v%d' % (r, r))
        a('v_add_f32 v4, v0, v1\nv_add_f32 v5, v2, v3\nv_add_f32 v6, v8, v9\nv_add_f32 v7, v10, v11\nv_add_f32 v16, v12, v13\nv_add_f32 v17, v14, v15')
        a('v_add_f32 v4, v4, v5\nv_add_f32 v6, v6, v7\nv_add_f32 v16, v16, v17\nv_add_f32 v4, v4, v6\nv_add_f32 v4, v4, v16')
        allg('v_add_f32', 4, 5)
        a('v_rcp_f32 v4, v4\ns_add_u32 s32, s34, s54')
        for r in regs: a('v_mul_f32 v%d, v%d, v4' % (r, r))
        for i in range(6): cvt(a, 16 + i, regs[2 * i], regs[2 * i + 1])
        a('buffer_store_dwordx4 v[16:19], v%d, s[4:7], s32 offen sc1' % VL)
        a('buffer_store_dwordx2 v[20:21], v%d, s[4:7], s34 offen sc1' % VPM)
        a.label('RT_p2')
        a('s_add_u32 s29, s29, %d\ns_add_u32 s33, s33, %d\ns_add_u32 s34, s34, %d' % (4 * 32768, 4 * 7168, 4 * PXSEG))
    gemm_loop(c, 'RT', 4, True, epi)

def gen_W3(c):
    from mainker import cvt
    a = c.a
    D = lambda ct, mt: 4 * (2 * ct + mt)
    HF = lambda ks, mt: 32 + 4 * (2 * ks + mt)
    UF = lambda hh, ct: 144 + 4 * (4 * hh + ct)
    PF = lambda hh, mt: 208 + 4 * (2 * hh + mt)
    VMF = lambda ct: 32 + 4 * ct
    PMF = lambda mt: 48 + 4 * mt
    XR, L16, VO, VRW, VRR, TMP = 240, 244, 245, 246, 247, 248
    W2 = lambda ks, ct: 256 + 4 * (4 * ks + ct)
    a.label('W3_role')
    a('s_sub_u32 s22, s22, 160\ns_cmp_ge_u32 s22, %d\ns_cbranch_scc1 M_exit' % (0 if c.opts.get('novm', 0) or c.opts.get('now3', 0) or c.opts.get('bare', 0) else 63))
    a('s_mul_i32 s24, s22, 37\ns_lshr_b32 s24, s24, 8\ns_mul_i32 s25, s24, 7\ns_sub_u32 s25, s22, s25')
    srd(a, 8, 42, 448 * 1792 * 2)
    srd(a, 12, 44, XSZ)
    srd(a, 52, 36, XSZ)
    a('v_lshlrev_b32 v%d, 4, v1' % L16)
    a('v_lshrrev_b32 v2, 3, v1\nv_mul_u32_u24 v2, 0x380, v2\nv_and_b32 v3, 7, v1\nv_lshl_add_u32 v6, v3, 4, v2')
    a('s_mul_i32 s26, s20, %d\ns_lshl_b32 s27, s25, 7\ns_add_u32 s26, s26, s27' % (448 * 896))
    a('s_mul_i32 s35, s20, 28672')
    a('v_lshrrev_b32 v2, 2, v1\nv_lshlrev_b32 v2, 7, v2\nv_and_b32 v3, 3, v1\nv_lshl_add_u32 v2, v3, 3, v2\nv_add_u32 v5, s35, v2')
    def ld(ch):
        for i in range(14):
            a('s_add_u32 m0, s35, %d\ns_nop 0' % ((ch % 2) * 14336 + i * 1024))
            a('buffer_load_dwordx4 v6, s[8:11], s26 offen lds')
            a('s_add_u32 s26, s26, %d' % (8 * 896))
    ld(0); ld(1)
    for ch in range(4):
        a('s_waitcnt vmcnt(%d)' % (14 if ch < 3 else 0))
        for tt in range(7):
            for ct in range(4):
                dst = W2(3 * ch + tt // 2, ct) + 2 * (tt % 2) if tt < 6 else W2(12 + ch // 2, ct) + 2 * (ch % 2)
                a('ds_read_b64_tr_b16 %s, v5 offset:%d' % (R(dst, 2), (ch % 2) * 14336 + 16 * tt * 128 + 32 * ct))
            if tt % 2 == 1: a('s_waitcnt lgkmcnt(4)')
        a('s_waitcnt lgkmcnt(0)')
        if ch + 2 < 4: ld(ch + 2)
    a('s_barrier')
    a('v_and_b32 v2, 15, v1\nv_lshrrev_b32 v3, 4, v1\nv_mul_u32_u24 v2, 0x380, v2\nv_lshl_add_u32 v2, v3, 3, v2')
    a('s_lshl_b32 s26, s25, 7\ns_lshl_b32 s27, s20, 5\ns_add_u32 s26, s26, s27\nv_add_u32 v%d, s26, v2' % VO)
    a('s_lshl_b32 s26, s20, 13\nv_add_u32 v%d, s26, v%d\ns_lshl_b32 s26, s20, 11\nv_add_u32 v%d, s26, v%d' % (VRW, L16, VRR, L16))
    c.rt(2)
    a.label('W3_top')
    a('s_lshl_b32 s32, s24, 6\ns_lshl_b32 s33, s20, 2\ns_add_u32 s26, s32, s33\ns_add_u32 s26, s26, 0x%x' % FLG_H)
    a('s_lshl_b32 s33, s20, 4\ns_add_u32 s27, s32, s33\ns_add_u32 s28, s27, 0x%x\ns_add_u32 s27, s27, 0x%x' % (FLG_P, FLG_U))
    a('s_add_u32 s29, s27, %d' % (FLG_V - FLG_U))
    a('s_mul_i32 s30, s24, 0x%x\ns_mul_i32 s33, s20, 28672\ns_add_u32 s30, s30, s33\ns_add_u32 s30, s30, 0x%x' % (HSEG, HB))
    a('s_mul_i32 s31, s24, 0x%x\ns_mul_i32 s33, s20, %d\ns_add_u32 s31, s31, s33\ns_lshl_b32 s33, s25, 12\ns_add_u32 s31, s31, s33\ns_add_u32 s31, s31, 0x%x' % (USEG, 4 * 28672, UB))
    a('s_mul_i32 s34, s24, 28672\ns_add_u32 s35, s34, 14336')
    c.wait_flags('W3h', 26, 1, TMP)
    c.wait_flags('W3u', 27, 4, TMP)
    for ks in range(14):
        for mt in range(2):
            a('s_add_u32 s63, s30, %d' % ((mt * 14 + ks) * 1024))
            a('buffer_load_dwordx4 %s, v%d, s[4:7], s63 offen sc1' % (vr(HF(ks, mt), 4), L16))
    for hh in range(4):
        for ct in range(4):
            a('buffer_load_dwordx4 %s, v%d, s[4:7], s31 offen offset:%d sc1' % (vr(UF(hh, ct), 4), L16, ct * 1024))
        a('s_add_u32 s31, s31, 28672')
    for mt in range(2):
        a('buffer_load_dwordx2 %s, v%d, s[52:55], s%d offen' % (vr(XR + 2 * mt, 2), VO, 34 + mt))
    for ks in range(14):
        a('s_waitcnt vmcnt(%d)' % (44 - 2 * ks))
        for ct in range(4):
            for mt in range(2):
                mfma(a, D(ct, mt), W2(ks, ct), HF(ks, mt), None if ks == 0 else D(ct, mt))
    a('s_mul_i32 s30, s24, %d\ns_lshl_b32 s33, s20, 13\ns_add_u32 s31, s30, s33\ns_add_u32 s31, s31, 0x%x' % (PXSEG, PX))
    a('s_lshl_b32 s33, s20, 11\ns_add_u32 s30, s30, s33\ns_add_u32 s30, s30, 0x%x' % (PX + 32768))
    a('s_mul_i32 s32, s24, 0x%x\ns_mul_i32 s33, s20, 28672\ns_add_u32 s32, s32, s33\ns_lshl_b32 s33, s25, 12\ns_add_u32 s32, s32, s33\ns_add_u32 s32, s32, 0x%x' % (VMSEG, VM))
    a('s_add_u32 s63, s31, 4096')
    l = c.spin_head('W3pv')
    a('buffer_load_dwordx4 %s, off, s[4:7], s28 sc1\nbuffer_load_dwordx4 %s, off, s[4:7], s29 sc1\ns_waitcnt vmcnt(0)' % (vr(TMP, 4), vr(TMP + 4, 4)))
    for i in range(3): a('v_min3_u32 v%d, v%d, v%d, v%d' % (TMP, TMP, TMP + 1 + 2 * i, TMP + 2 + 2 * i))
    a('v_min_u32 v%d, v%d, v%d' % (TMP, TMP, TMP + 7))
    a('v_cmp_eq_u32 vcc, 0, v%d\ns_cbranch_vccnz %s' % (TMP, l))
    for hh in range(4):
        for mt in range(2):
            a('buffer_load_dwordx4 %s, v%d, s[4:7], s%d offen offset:%d sc1' % (vr(PF(hh, mt), 4), L16, 31 if hh < 2 else 63, ((hh % 2) * 2 + mt) * 1024))
    for mt in range(2):
        a('buffer_load_dwordx4 %s, v%d, s[4:7], s30 offen offset:%d sc1' % (vr(PMF(mt), 4), L16, mt * 1024))
    for ct in range(4):
        a('buffer_load_dwordx4 %s, v%d, s[4:7], s%d offen offset:%d sc1' % (vr(VMF(ct), 4), L16, 32, ct * 1024))
    for hh in range(4):
        a('s_waitcnt vmcnt(%d)' % (12 - 2 * hh))
        for ct in range(4):
            for mt in range(2):
                mfma(a, D(ct, mt), UF(hh, ct), PF(hh, mt), D(ct, mt))
    for ct in range(4):
        a('s_waitcnt vmcnt(%d)' % (3 - ct))
        for mt in range(2):
            mfma(a, D(ct, mt), VMF(ct), PMF(mt), D(ct, mt))
    a('s_barrier')
    for ct in range(4):
        for mt in range(2):
            if ct == 3: a('s_nop 1')
            a('ds_write_b128 v%d, %s offset:%d' % (VRW, vr(D(ct, mt), 4), (2 * ct + mt) * 1024))
    a('s_waitcnt lgkmcnt(0)\ns_barrier')
    for mt in range(2):
        for p in range(4):
            a('ds_read_b128 %s, v%d offset:%d' % (vr(16 * mt + 4 * p, 4), VRR, p * 8192 + mt * 1024))
    for mt in range(2):
        b = 16 * mt
        for q in range(2):
            a('v_lshlrev_b32 v%d, 16, v%d\nv_and_b32 v%d, 0xffff0000, v%d' % (32 + 2 * q, XR + 2 * mt + q, 33 + 2 * q, XR + 2 * mt + q))
        a('s_waitcnt lgkmcnt(%d)' % (4 - 4 * mt))
        for r in range(4):
            a('v_add_f32 v%d, v%d, v%d\nv_add_f32 v%d, v%d, v%d\nv_add_f32 v%d, v%d, v%d\nv_add_f32 v%d, v%d, v%d' % (
                b + r, b + r, b + 4 + r, b + 8 + r, b + 8 + r, b + 12 + r, b + r, b + r, 32 + r, b + r, b + r, b + 8 + r))
        cvt(a, 36 + 2 * mt, b, b + 1); cvt(a, 37 + 2 * mt, b + 2, b + 3)
        a('buffer_store_dwordx2 %s, v%d, s[12:15], s%d offen' % (vr(36 + 2 * mt, 2), VO, 34 + mt))
    a('s_add_u32 s24, s24, 9\ns_cmp_lt_u32 s24, 64\ns_cbranch_scc1 W3_top')
    c.end()

def gen_workers(c):
    a = c.a
    a.label('W_roles')
    a('s_sub_u32 s25, s21, 1\ns_lshl_b32 s25, s25, 5\ns_add_u32 s22, s22, s25')
    a('v_lshlrev_b32 v%d, 4, v1' % VL)
    a('s_cmp_ge_u32 s22, 160\ns_cbranch_scc1 W3_role')
    a('s_cmp_ge_u32 s22, 128\ns_cbranch_scc1 RH_role')
    a('s_cmp_ge_u32 s22, 64\ns_cbranch_scc1 RT_role')
    gen_RU(c)
    gen_RT(c)
    gen_RH(c)
    gen_W3(c)
```

```python
from asm import *
from layout import *
from prep import srd, f2u, WSZ
import os
FS = int(os.environ.get('FS', 256))
FW = FWR
I0, I1 = 128, 192
KX, KM, KQ, KK, KV, KO = 72, 74, 76, 78, 80, 82

def js(c, k):
    if c.opts.get('jst', 99) == k: c.rt(1, False)

def job_ids(a, src):
    a('s_mul_i32 s57, s%d, 9363\ns_lshr_b32 s57, s57, 16\ns_mul_i32 s24, s57, 7\ns_sub_u32 s24, s%d, s24\ns_and_b32 s25, s57, 15' % (src, src))

def wait_word(c, name, off, val, tmp):
    a = c.a
    l = c.spin_head(name)
    a('buffer_load_dword v%d, off, s[16:19], 0 offset:%d sc1\ns_waitcnt vmcnt(0)\nv_cmp_gt_u32 vcc, %d, v%d\ns_cbranch_vccnz %s' % (tmp, off, val, tmp, l))

def check_word(c, name, off, val, tmp):
    a = c.a
    ok = a.newlabel(name + 'ok')
    a('v_cmp_gt_u32 vcc, %d, v%d\ns_cbranch_vccz %s' % (val, tmp, ok))
    wait_word(c, name, off, val, tmp)
    a.label(ok)

def gen_jobs(c):
    a = c.a
    a.label('J_role')
    js(c, 0)
    a('s_sub_u32 s26, s65, 1\ns_lshl_b32 s26, s26, 5\ns_add_u32 s26, s26, s66')
    job_ids(a, 26)
    a('v_and_b32 v10, 15, v1\nv_lshrrev_b32 v11, 4, v1')
    a('v_and_b32 v13, 7, v1\nv_xor_b32 v13, v13, v11\nv_lshlrev_b32 v4, 4, v13\nv_xor_b32 v5, 64, v4')
    a('v_lshrrev_b32 v13, 3, v1\nv_lshl_add_u32 v2, v13, 13, v4\nv_add_u32 v13, 8, v13\nv_lshl_add_u32 v3, v13, 13, v5')
    a('s_cmp_lt_u32 s65, 4\ns_cbranch_scc1 J_nx')
    srd(a, 8, KX, XSZ)
    a('s_sub_u32 s64, s26, 96\ns_lshl_b32 s27, s64, 2\ns_add_u32 s27, s27, s20\ns_mul_i32 s27, s27, 3584\nv_mul_u32_u24 v13, 0x380, v11\nv_lshl_add_u32 v13, v10, 3, v13')
    for i in range(7):
        a('buffer_load_dwordx2 %s, v13, s[8:11], s27 offen offset:%d' % (vr(230 + 2 * i, 2), 128 * i))
    a.label('J_nx')
    a('s_lshl_b32 s26, s25, 9')
    a('s_lshl_b32 s27, s24, 19\ns_add_u32 s28, s27, s26\ns_lshl_b32 s27, s20, 17\ns_add_u32 s28, s28, s27')
    a('s_lshl_b32 s29, s20, 11')
    a('s_cmp_lt_u32 s57, 16\ns_cselect_b32 s8, s%d, s%d\ns_cselect_b32 s9, s%d, s%d\ns_cselect_b32 s12, s%d, s%d\ns_cselect_b32 s13, s%d, s%d' % (KV, KQ, KV + 1, KQ + 1, KO, KK, KO + 1, KK + 1))
    a('s_mov_b32 s10, 0x%x\ns_mov_b32 s11, 0x20000\ns_mov_b32 s14, 0x%x\ns_mov_b32 s15, 0x20000' % (WSZ, WSZ))
    for q in range(4):
        for hf in range(2):
            a('s_add_u32 m0, s29, %d\ns_add_u32 s27, s28, %d' % (q * 8192 + hf * 1024, q * 128))
            a('buffer_load_dwordx4 v%d, s[8:11], s27 offen lds' % (2 + hf))
    a('v_lshrrev_b32 v13, 1, v10\nv_xor_b32 v13, v13, v11\nv_lshlrev_b32 v13, 4, v13\nv_lshl_add_u32 v228, v10, 7, v13\nv_xor_b32 v229, 64, v228')
    a('v_lshlrev_b32 v12, 4, v1')
    a('s_lshl_b32 s30, s20, 3\ns_add_u32 s30, s30, s24\ns_lshl_b32 s30, s30, 2\ns_mul_i32 s31, s57, %d\ns_add_u32 s30, s30, s31\ns_add_u32 s30, s30, 0x%x' % (FS, FW))
    a('s_mul_i32 s32, s25, 0x%x\ns_lshl_b32 s33, s24, 11\ns_add_u32 s32, s32, s33' % MAT)
    a('s_cmp_lt_u32 s57, 16\ns_cbranch_scc1 J_b')
    ACC = lambda mu: 16 + 4 * mu
    BF = lambda t, ks: 32 + 32 * (t % 4) + 4 * ks
    OUT = lambda t: 160 + 8 * t
    TI, TF = 216, 217
    ops = []
    def iss(n, k): ops.extend([n] * k)
    def wait(n):
        k = len(ops) - 1 - max(i for i, x in enumerate(ops) if x == n)
        a('s_waitcnt vmcnt(%d)' % k)
    def flag(v):
        a('v_mov_b32 v%d, %d\ns_mov_b64 exec, 1\nbuffer_store_dword v%d, off, s[4:7], s30 sc1\ns_mov_b64 exec, -1' % (TF + v % 2, v, TF + v % 2)); iss('f', 1)
        js(c, 9 + v)
    def body(load, read, nxt, scale, bar, touch):
        del ops[:]
        iss('F', 8)
        for t in range(3):
            for i in range(8): load(t, i)
            iss('L%d' % t, 8)
        if c.opts.get('touch', 1): touch(); iss('T', 1)
        def rdF(ks):
            for mu in range(4):
                a('ds_read_b128 %s, v%d offset:%d' % (ar(4 * (ks * 4 + mu), 4), 228 + ks % 2, (ks // 2) * 8192 + mu * 2048))
        def arrive(t):
            wait('L%d' % t)
            if bar or t in (0, 4): a('s_barrier')
            js(c, 2 + t)
            read(t)
            if t == 4: check_word(c, 'Ji', I0, 1, TI)
            if t >= 4: flag(t - 3)
        arrive(0)
        for t in range(7):
            a('s_waitcnt lgkmcnt(0)')
            if t == 0: rdF(0); rdF(1); rdF(2)
            for ks in range(8):
                if t == 0:
                    a('s_waitcnt lgkmcnt(%d)' % (4 * min(2, 7 - ks)))
                    if ks + 3 < 8: rdF(ks + 3)
                for mu in range(4):
                    a('v_mfma_f32_16x16x32_bf16 %s, %s, %s, %s' % (vr(ACC(mu), 4), ar(4 * (ks * 4 + mu), 4), vr(BF(t, ks), 4), '0' if ks == 0 else vr(ACC(mu), 4)))
                    if mu == 0 and t + 3 < 7: load(t + 3, ks); iss('L%d' % (t + 3), 1)
            if t == 0: a('buffer_load_dword v%d, off, s[16:19], 0 offset:%d sc1' % (TI, I0)); iss('I', 1)
            if t < 6: arrive(t + 1)
            else: a('s_nop 6')
            if scale:
                for mu in range(4):
                    for r in range(4): a('v_mul_f32 v%d, s34, v%d' % (ACC(mu) + r, ACC(mu) + r))
            o = OUT(t)
            for aa in range(2):
                for q in range(4):
                    mu = aa + 2 * (q & 1); r0 = 2 * (q >> 1)
                    a('v_cvt_pk_bf16_f32 v%d, v%d, v%d' % (o + 4 * aa + q, ACC(mu) + r0, ACC(mu) + r0 + 1))
            a('buffer_store_dwordx4 %s, v12, s[4:7], s32 offen sc1' % vr(o, 4))
            a('buffer_store_dwordx4 %s, v12, s[4:7], s32 offen offset:1024 sc1' % vr(o + 4, 4)); iss('S%d' % t, 2)
            nxt(t)
        a('s_branch J_tail')
    a('s_mov_b32 s34, 0x%x' % f2u(1.4426950408889634 / 16.0))
    a('s_mul_i32 s33, s20, %d\ns_add_u32 s32, s32, s33' % (49 * 2048))
    a('v_bfe_u32 v13, v1, 3, 1\nv_bfe_u32 v14, v1, 4, 1\nv_lshl_add_u32 v13, v14, 2, v13')
    a('v_lshrrev_b32 v14, 5, v1\nv_lshl_add_u32 v15, v14, 4, v13\nv_lshl_add_u32 v14, v14, 3, v13')
    for hf in range(2):
        a('v_add_u32 v13, %d, v15\nv_lshl_add_u32 v%d, v13, 13, v%d' % (32 * hf, 6 + hf, 4 + hf))
        a('v_add_u32 v13, %d, v14\nv_lshl_add_u32 v%d, v13, 13, v%d' % (16 * hf, 8 + hf, 4 + hf))
    a('s_lshl_b32 s35, s20, 6')
    for t in range(4):
        a('s_add_u32 s27, s35, %d\ns_lshl_b32 s27, s27, 13\ns_add_u32 s%d, s27, s26' % (8 * (t // 2) + 2 * (t % 2), 50 + t))
    a('s_lshl_b32 s35, s20, 5')
    for t in (4, 5):
        a('s_add_u32 s27, s35, %d\ns_lshl_b32 s27, s27, 13\ns_add_u32 s%d, s27, s26' % (256 + 2 * (t % 2), 50 + t))
    a('s_lshr_b32 s35, s20, 1\ns_lshl_b32 s35, s35, 5\ns_and_b32 s27, s20, 1\ns_lshl_b32 s27, s27, 1\ns_add_u32 s27, s27, s35\ns_add_u32 s27, s27, 384')
    a('s_lshl_b32 s27, s27, 13\ns_add_u32 s56, s27, s26')
    a('s_lshl_b32 s35, s20, 15\ns_add_u32 s35, s35, 32768\nv_add_u32 v220, s35, v228\nv_add_u32 v221, s35, v229')
    def loadA(t, i):
        for q in [i // 2]:
            for hf in [i % 2]:
                a('s_add_u32 m0, s35, %d\ns_add_u32 s27, s%d, %d' % ((t % 4) * 8192 + q * 2048 + hf * 1024, 50 + t, 128 * q))
                a('buffer_load_dwordx4 v%d, s[12:15], s27 offen lds' % ((6 if t < 4 else 8) + hf))
    def readA(t):
        for ks in range(8):
            a('ds_read_b128 %s, v%d offset:%d' % (vr(BF(t, ks), 4), 220 + ks % 2, (t % 4) * 8192 + (ks // 2) * 2048))
    def touchA():
        a('v_lshrrev_b32 v14, 2, v1\nv_and_b32 v15, 3, v1\nv_lshlrev_b32 v14, 13, v14\nv_lshl_add_u32 v14, v15, 7, v14')
        a('buffer_load_dword v246, v14, s[12:15], s28 offen')
    body(loadA, readA, lambda t: a('s_add_u32 s32, s32, %d' % (7 * 2048)), True, False, touchA)
    a.label('J_b')
    a('s_lshr_b32 s33, s25, 2\ns_lshl_b32 s33, s33, 1')
    for t in range(7):
        a('s_add_u32 s27, s33, %d\ns_cmp_ge_u32 s27, 7\ns_cselect_b32 s31, 7, 0\ns_sub_u32 s%d, s27, s31' % (t, 50 + t))
    a('s_mul_i32 s27, s20, 14336\ns_add_u32 s34, s32, s27\ns_add_u32 s34, s34, 0x%x' % BFR)
    a('s_mul_i32 s27, s50, 57344\ns_add_u32 s32, s34, s27')
    a('s_mul_i32 s26, s25, 229376\ns_mul_i32 s27, s20, 57344\ns_add_u32 s26, s26, s27')
    a('v_lshrrev_b32 v13, 3, v1\nv_mul_u32_u24 v13, 0x380, v13\nv_lshlrev_b32 v14, 1, v11\nv_and_b32 v15, 7, v1\nv_xor_b32 v14, v14, v15')
    a('v_lshl_add_u32 v6, v14, 4, v13\nv_xor_b32 v14, 4, v14\nv_lshl_add_u32 v7, v14, 4, v13')
    a('s_lshl_b32 s35, s20, 13\ns_add_u32 s35, s35, 32768')
    a('v_bfe_u32 v13, v1, 2, 2\nv_lshrrev_b32 v14, 1, v13\nv_lshl_add_u32 v14, v11, 1, v14\nv_and_b32 v14, 3, v14\nv_xor_b32 v14, s20, v14')
    a('v_lshl_add_u32 v13, v11, 3, v13\nv_lshlrev_b32 v13, 7, v13\nv_lshl_add_u32 v13, v14, 5, v13\nv_and_b32 v14, 3, v1\nv_lshl_add_u32 v13, v14, 3, v13')
    a('v_add_u32 v220, 32768, v13\nv_xor_b32 v221, 64, v220\nv_add_u32 v221, 512, v221\nv_add_u32 v222, 0x10000, v220\nv_add_u32 v223, 0x10000, v221')
    def loadB(t, i):
        if i == 0: a('s_lshl_b32 s31, s%d, 7\ns_add_u32 s31, s31, s26' % (50 + t))
        for i in [i]:
            a('s_add_u32 m0, s35, %d\ns_add_u32 s27, s31, %d' % ((t % 4) * 32768 + i * 1024, i * 7168))
            a('buffer_load_dwordx4 v%d, s[12:15], s27 offen lds' % (6 + i % 2))
    def readB(t):
        for ks in range(8):
            for hf in range(2):
                a('ds_read_b64_tr_b16 %s, v%d offset:%d' % (vr(BF(t, ks) + 2 * hf, 2), 220 + 2 * ((t % 4) // 2) + hf, (t % 2) * 32768 + ks * 4096))
            if ks == 6: a('s_waitcnt lgkmcnt(12)')
    def nxtB(t):
        if t < 6: a('s_mul_i32 s27, s%d, 57344\ns_add_u32 s32, s34, s27' % (51 + t))
    def touchB():
        a('s_lshl_b32 s27, s24, 2\ns_add_u32 s27, s27, s20\ns_lshl_b32 s27, s27, 13\ns_mul_i32 s31, s25, 229376\ns_add_u32 s27, s27, s31\nv_lshlrev_b32 v14, 7, v1')
        a('buffer_load_dword v246, v14, s[12:15], s27 offen')
    body(loadB, readB, nxtB, False, True, touchB)

    a.label('J_tail')
    wait('S3'); flag(4)
    a('s_cmp_lt_u32 s65, 4\ns_cbranch_scc1 J_t1')
    X = lambda i: 32 + i
    for i in range(14):
        a('v_lshlrev_b32 v%d, 16, v%d\nv_and_b32 v%d, 0xffff0000, v%d' % (X(2 * i), 230 + i, X(2 * i + 1), 230 + i))
    def sum28(first, step):
        for k in range(4): first(k)
        for i in range(4, 28): step(i)
        a('v_add_f32 v16, v16, v17\nv_add_f32 v18, v18, v19\nv_add_f32 v16, v16, v18')
        for sh in (8, 4, 2, 1):
            a('s_nop 1\nv_add_f32_dpp v16, v16, v16 row_ror:%d row_mask:0xf bank_mask:0xf' % sh)
    def bfround(r):
        a('v_cvt_pk_bf16_f32 v%d, v%d, v%d\nv_lshlrev_b32 v%d, 16, v%d' % (r, r, r, r, r))
    sum28(lambda k: a('v_mov_b32 v%d, v%d' % (16 + k, X(k))), lambda i: a('v_add_f32 v%d, v%d, v%d' % (16 + i % 4, 16 + i % 4, X(i))))
    a('v_mul_f32 v20, 0x%x, v16' % f2u(1.0 / 448))
    sum28(lambda k: a('v_sub_f32 v21, v%d, v20\nv_mul_f32 v%d, v21, v21' % (X(k), 16 + k)),
          lambda i: a('v_sub_f32 v%d, v%d, v20\nv_fmac_f32 v%d, v%d, v%d' % (21 + i % 2, X(i), 16 + i % 4, 21 + i % 2, 21 + i % 2)))
    a('v_mul_f32 v16, 0x%x, v16' % f2u(1.0 / 448))
    bfround(16)
    a('v_add_f32 v16, 0x%x, v16' % f2u(1e-5))
    bfround(16)
    a('v_sqrt_f32 v16, v16\ns_nop 0')
    bfround(16)
    a('v_rcp_f32 v16, v16')
    bfround(20)
    a.label('J_t1')
    wait('S5'); flag(6)
    a('s_cmp_lt_u32 s65, 4\ns_cbranch_scc1 J_t2')
    a('s_lshl_b32 s26, s20, 2\nv_add_u32 v13, s26, v11\nv_lshrrev_b32 v14, 1, v13\nv_lshrrev_b32 v15, 1, v10\nv_xor_b32 v14, v14, v15')
    a('v_mul_u32_u24 v13, 0x380, v13\nv_lshl_add_u32 v13, v14, 4, v13\nv_and_b32 v14, 1, v10\nv_lshl_add_u32 v13, v14, 3, v13')
    for i in range(14):
        x0, x1 = X(2 * i), X(2 * i + 1)
        a('v_sub_f32 v%d, v%d, v20\nv_sub_f32 v%d, v%d, v20' % (x0, x0, x1, x1))
        a('v_cvt_pk_bf16_f32 v21, v%d, v%d' % (x0, x1))
        a('v_lshlrev_b32 v%d, 16, v21\nv_and_b32 v%d, 0xffff0000, v21' % (x0, x1))
        a('v_mul_f32 v%d, v16, v%d\nv_mul_f32 v%d, v16, v%d' % (x0, x0, x1, x1))
        a('v_cvt_pk_bf16_f32 v%d, v%d, v%d' % (230 + i, x0, x1))
        if i % 2: a('ds_write_b64 v13, %s offset:%d' % (vr(229 + i, 2), (i // 2) * 128))
    a('v_mul_u32_u24 v2, 0x380, v10\nv_lshrrev_b32 v3, 1, v10\ns_and_b32 s26, s20, 1\ns_waitcnt lgkmcnt(0)\ns_barrier')
    a('s_cmp_ge_u32 s20, 2\ns_cbranch_scc1 J_k')
    a('v_and_b32 v14, 1, v11\nv_lshl_add_u32 v2, v14, 3, v2\nv_lshrrev_b32 v14, 1, v11\nv_xor_b32 v3, v3, v14\ns_lshl_b32 s27, s26, 1\nv_xor_b32 v3, s27, v3')
    a('v_lshl_add_u32 v4, v3, 4, v2\nv_xor_b32 v3, 4, v3\nv_lshl_add_u32 v5, v3, 4, v2')
    for kk in range(7):
        a('ds_read_b64 %s, v4 offset:%d\nds_read_b64 %s, v5 offset:%d' % (vr(32 + 4 * kk, 2), 128 * kk, vr(34 + 4 * kk, 2), 128 * kk))
    a('s_mul_i32 s27, s64, 14336\ns_lshl_b32 s26, s26, 10\ns_add_u32 s26, s26, s27\ns_add_u32 s26, s26, 0x%x' % XP)
    a('s_waitcnt lgkmcnt(0)')
    for kk in range(7): a('v_swap_b32 v%d, v%d' % (33 + 4 * kk, 34 + 4 * kk))
    n0 = len(ops)
    wait('S6'); flag(7)
    for kk in range(7):
        a('buffer_store_dwordx4 %s, v12, s[4:7], s26 offen offset:%d sc1' % (vr(32 + 4 * kk, 4), (kk % 2) * 2048))
        if kk % 2: a('s_add_u32 s26, s26, 4096')
    a('s_branch J_t3')
    a.label('J_k')
    a('v_xor_b32 v3, v3, v11\ns_lshl_b32 s27, s26, 2\nv_xor_b32 v3, s27, v3\nv_lshl_add_u32 v4, v3, 4, v2')
    for u in range(7):
        a('ds_read_b128 %s, v4 offset:%d' % (vr(32 + 4 * u, 4), 128 * u))
    a('v_lshrrev_b32 v13, 1, v11\nv_and_b32 v14, 1, v11\nv_lshlrev_b32 v14, 9, v14\nv_lshl_add_u32 v14, v10, 4, v14\nv_lshl_add_u32 v14, v13, 10, v14')
    a('s_lshr_b32 s27, s64, 1\ns_lshl_b32 s27, s27, 15\ns_and_b32 s28, s64, 1\ns_lshl_b32 s28, s28, 11\ns_add_u32 s27, s27, s28\ns_add_u32 s27, s27, 0x%x' % XK)
    a('s_lshl_b32 s28, s26, 10\ns_add_u32 s28, s28, s27\ns_lshl_b32 s29, s26, 13\ns_add_u32 s29, s29, s27\ns_lshl_b32 s31, s26, 14\ns_add_u32 s31, s31, s27')
    del ops[n0:]
    wait('S6'); flag(7)
    a('s_waitcnt lgkmcnt(0)')
    for u in range(7):
        if u < 4: dst = [(28, u * 8192, 12)]
        elif u < 6: dst = [(29, (u - 4) * 16384 + 4096, 14)]
        else: dst = [(31, k * 8192 + 4096 + 256, 14) for k in range(2)]
        for sb, off, vreg in dst:
            a('s_add_u32 s27, s%d, %d' % (sb, off))
            a('buffer_store_dwordx4 %s, v%d, s[4:7], s27 offen sc1' % (vr(32 + 4 * u, 4), vreg))
    a.label('J_t3')
    a('s_waitcnt vmcnt(0)\ns_barrier\ns_cmp_lg_u32 s20, 0\ns_cbranch_scc1 J_t4')
    a('s_lshr_b32 s30, s64, 2\ns_mul_i32 s30, s30, %d\ns_and_b32 s31, s64, 3\ns_lshl_b32 s31, s31, 5\ns_add_u32 s30, s30, s31\ns_add_u32 s30, s30, 0x%x' % (FS, FW + 28))
    a('s_mov_b64 exec, 1\nbuffer_store_dword v%d, off, s[4:7], s30 sc1\ns_mov_b64 exec, -1' % (TF + 1))
    a.label('J_t4')
    js(c, 99)
    a('s_branch M_roles')
    a.label('J_t2')
    del ops[n0:]
    wait('S6'); flag(7)
    a('s_barrier')
    js(c, 99)
    a('s_branch M_roles')

def gen_ln(c):
    a = c.a
    a.label('L_role')
    js(c, 0)
    a('s_lshl_b32 s24, s66, 2\ns_add_u32 s24, s24, s20\nv_lshlrev_b32 v12, 4, v1')
    for r in range(4):
        a('v_mov_b32 v%d, -1\nv_mov_b32 v%d, 0' % (4 + r, 240 + r))
    a('s_cmp_lg_u32 s24, 1\ns_cbranch_scc1 L_nz\ns_mov_b32 s26, 0x%x' % FW)
    a('v_lshrrev_b32 v13, 3, v1\nv_mul_u32_u24 v13, %d, v13\nv_and_b32 v14, 7, v1\nv_lshl_add_u32 v13, v14, 4, v13' % FS)
    for i in range(4):
        a('buffer_store_dwordx4 v[240:243], v13, s[4:7], s26 offen sc1\ns_add_u32 s26, s26, %d' % (8 * FS))
    a('s_waitcnt vmcnt(0)\nv_mov_b32 v13, 1\ns_mov_b64 exec, 1\nbuffer_store_dword v13, off, s[16:19], 0 offset:%d sc1\ns_mov_b64 exec, -1' % I0)
    a.label('L_nz')
    a('s_lshl_b32 s26, s66, 12\nv_lshlrev_b32 v3, 4, v0\nv_add_u32 v3, s26, v3')
    srd(a, 12, 48, FLGSZ - 4096, FLG)
    a('buffer_store_dwordx4 v[240:243], v3, s[12:15], 0 offen sc1')
    for (base, size, f) in ((MEMX + 7168, MEMSZ - 7168, ' sc1'), (MEMC + 7168, MEMSZ - 7168, ' sc1'), (PC, PCSZ, ' sc1'), (VM + 63 * VMSEG, VMSEG, ' sc1'), (PX + 63 * PXSEG, PXSEG, ' sc1')):
        srd(a, 12, 48, size, base)
        for p in range((size + 131071) // 131072):
            a('s_mov_b32 s26, 0x%x' % (p * 131072))
            a('buffer_store_dwordx4 v[4:7], v3, s[12:15], s26 offen%s' % f)
    a('s_cmp_lg_u32 s24, 0\ns_cbranch_scc1 L_end')
    srd(a, 52, KM, 7168)
    a('v_lshrrev_b32 v11, 4, v1\nv_and_b32 v13, 7, v1\nv_mul_u32_u24 v13, 0x380, v13\nv_bfe_u32 v14, v1, 3, 1\nv_lshl_add_u32 v13, v14, 6, v13\nv_lshl_add_u32 v13, v11, 4, v13')
    for kk in range(7):
        a('buffer_load_dwordx4 %s, v13, s[52:55], 0 offen offset:%d' % (vr(140 + 4 * kk, 4), 128 * kk))
    a('s_waitcnt vmcnt(0)')
    for i in range(28):
        a('v_min_u32 v%d, -2, v%d' % (140 + i, 140 + i))
    for base, f in ((MEMC, ' sc1'), (MEMX, ' sc1')):
        for kk in range(7):
            a('s_mov_b32 s26, 0x%x' % (base + kk * 1024))
            a('buffer_store_dwordx4 %s, v12, s[4:7], s26 offen%s' % (vr(140 + 4 * kk, 4), f))
    a.label('L_end')
    signal1(c)
    wait_word(c, 'Li', I0, 1, 3)

def ln_load(a, r):
    a('s_mov_b32 s63, 0x%x' % (FW + 28))
    a('buffer_load_dword v%d, v%d, s[4:7], s63 offen sc1\ns_add_u32 s63, s63, %d\nbuffer_load_dword v%d, v%d, s[4:7], s63 offen sc1' % (r, r + 3, 16 * FS, r + 1, r + 3))
    a('buffer_load_dword v%d, off, s[16:19], 0 offset:%d sc1' % (r + 2, I1))
def ln_test(a, r):
    a('v_lshrrev_b32 v%d, 5, v%d\nv_min3_u32 v%d, v%d, v%d, v%d\nv_cmp_eq_u32 vcc, 0, v%d' % (r + 2, r + 2, r, r, r + 1, r + 2, r))
def ln_addr(a, r, lane):
    a('v_lshrrev_b32 v%d, 2, v%d\nv_mul_u32_u24 v%d, %d, v%d\nv_and_b32 v%d, 3, v%d\nv_lshl_add_u32 v%d, v%d, 5, v%d' % (r + 3, lane, r + 3, FS, r + 3, r, lane, r + 3, r, r + 3))
def ln_wait1(c, name, r):
    a = c.a
    l = a.newlabel('one')
    a('s_cmp_lg_u32 s20, 0\ns_cbranch_scc1 %s' % l)
    ln_wait(c, name, r)
    a.label(l)
    a('s_barrier')
def ln_wait(c, name, r, lane=1):
    a = c.a
    ln_addr(a, r, lane)
    l = c.spin_head(name)
    ln_load(a, r)
    a('s_waitcnt vmcnt(0)')
    ln_test(a, r)
    a('s_cbranch_vccnz %s' % l)
def ln_check(c, name, r, lane):
    a = c.a
    ok = a.newlabel(name + 'ok')
    ln_test(a, r)
    a('s_cbranch_vccz %s' % ok)
    ln_wait(c, name, r, lane)
    a.label(ok)

def signal1(c, n=0):
    a = c.a
    l = a.newlabel('sig')
    a('s_waitcnt vmcnt(%d)\ns_barrier\ns_cmp_lg_u32 s20, 0\ns_cbranch_scc1 %s' % (n, l))
    a('v_mov_b32 v2, 1\ns_mov_b64 exec, 1\nbuffer_atomic_add v2, off, s[16:19], 0 offset:%d sc1\ns_mov_b64 exec, -1' % I1)
    a.label(l)
    if c.opts.get('jst', 99) > 3: c.rt(1, False)

def fw_load(a, dst, vaddr, soff):
    a('buffer_load_dword v%d, v%d, s[4:7], s%d offen sc1' % (dst, vaddr, soff))

def fw_need(c, name, thr, dst, vaddr, soff):
    a = c.a
    ok = a.newlabel(name + 'ok')
    a('v_cmp_gt_u32 vcc, %s, v%d\ns_cbranch_vccz %s' % (thr, dst, ok))
    l = c.spin_head(name)
    fw_load(a, dst, vaddr, soff)
    a('s_waitcnt vmcnt(0)\nv_cmp_gt_u32 vcc, %s, v%d\ns_cbranch_vccnz %s' % (thr, dst, l))
    a.label(ok)

def wait_all(c, name, mreg_expr):
    a = c.a
    a(mreg_expr)
    a('s_mul_i32 s26, s26, %d\ns_add_u32 s26, s26, 0x%x' % (FS, FW))
    one = a.newlabel('one')
    if c.opts.get('one', 1): a('s_cmp_lg_u32 s20, 0\ns_cbranch_scc1 %s' % one)
    a('v_and_b32 v3, 7, v1\nv_min_u32 v3, 6, v3\nv_and_b32 v4, 24, v1\nv_add_lshl_u32 v3, v3, v4, 2')
    l = c.spin_head(name)
    fw_load(a, 4, 3, 26)
    a('s_waitcnt vmcnt(0)\nv_cmp_gt_u32 vcc, 7, v4\ns_cbranch_vccnz %s' % l)
    a.label(one)
    if c.opts.get('one', 1): a('s_barrier')
```

```python
from asm import *
from layout import *
from prep import srd, f2u

OOB = 0x40000000
DUMMY = TS + (1 << 20) - 65536
NEGBIG = f2u(-1.4426950e9)

def WREG(b):
    return 256 + 8 * b if b < 32 else 120 + 8 * (b - 32)

class Ctx:
    def __init__(self, a, opts):
        self.a = a; self.opts = opts
        self.ts = opts.get('ts', 0)
    def spin_head(self, name):
        l = self.a.newlabel(name)
        self.a.label(l)
        self.a('s_sub_u32 s23, s23, 1\ns_cbranch_scc1 M_exit')
        return l
    def check_poison(self, regs, tmp):
        a = self.a
        a('v_max3_u32 v%d, v%d, v%d, v%d' % (tmp, regs[0], regs[1], regs[2]))
        i = 3
        while i + 1 < len(regs):
            a('v_max3_u32 v%d, v%d, v%d, v%d' % (tmp, tmp, regs[i], regs[i + 1])); i += 2
        if i < len(regs):
            a('v_max_u32 v%d, v%d, v%d' % (tmp, tmp, regs[i]))
        a('v_cmp_eq_u32 vcc, -1, v%d' % tmp)
    def wait_flags(self, name, soff, n, tmp):
        a = self.a
        l = self.spin_head(name)
        a('buffer_load_dword%s %s, off, s[4:7], s%d sc1' % ('' if n == 1 else 'x%d' % n, vr(tmp, n), soff))
        a('s_waitcnt vmcnt(0)')
        for i in range(1, n):
            a('v_min_u32 v%d, v%d, v%d' % (tmp, tmp, tmp + i))
        a('v_cmp_eq_u32 vcc, 0, v%d\ns_cbranch_vccnz %s' % (tmp, l))
    def poll(self, name, loads, regs, tmp, depth, pre=None):
        a = self.a
        for d in range(depth - 1):
            for l in loads: a(l)
        lab = self.spin_head(name)
        for l in loads: a(l)
        a('s_waitcnt vmcnt(%d)' % (len(loads) * (depth - 1)))
        if pre: pre()
        self.check_poison(regs, tmp)
        a('s_cbranch_vccnz %s' % lab)
    def rt(self, i, wait=True):
        if self.opts.get('rt', 0):
            if wait: self.a('s_waitcnt vmcnt(0)')
            self.a('s_memrealtime s[%d:%d]\ns_waitcnt lgkmcnt(0)' % (90 + 2 * i, 91 + 2 * i))
            if self.opts.get('clk', 0) and i >= 2:
                self.a('s_memtime s[%d:%d]\ns_waitcnt lgkmcnt(0)' % (86 + 2 * i, 87 + 2 * i))
    def ws(self, i):
        if self.opts.get('wst', 0): self.a('s_memrealtime s[%d:%d]' % (64 + 2 * i, 65 + 2 * i))
    def wflush(self, role, sub, tmp):
        if not self.opts.get('wst', 0): return
        a = self.a
        a('s_waitcnt lgkmcnt(0)\ns_lshl_b32 s62, s24, 4\ns_add_u32 s62, s62, s%d\ns_lshl_b32 s62, s62, 4\ns_add_u32 s62, s62, 0x%x' % (sub, TS + 0x40000 + role * 0x4000))
        for i in range(4): a('v_mov_b32 v%d, s%d' % (tmp + i, 64 + 2 * i))
        a('s_mov_b64 exec, 1\nbuffer_store_dwordx4 %s, off, s[4:7], s62\ns_mov_b64 exec, -1\ns_nop 1' % vr(tmp, 4))
        if self.opts.get('dbgt', 0) and role < 3:
            l = a.newlabel('dg')
            a('s_cmp_lg_u32 s24, 63\ns_cbranch_scc1 %s\ns_mov_b64 exec, 1' % l)
            for i, wd in {0: ((1, 13), (2, 14), (3, 15)), 1: ((1, 10), (3, 11)), 2: ((2, 5),)}[role]:
                a('buffer_atomic_umax v%d, off, s[16:19], 0 offset:%d' % (tmp + i, 4 * wd))
            a('s_mov_b64 exec, -1')
            a.label(l)
    def end(self):
        self.a('s_branch M_exit' if self.opts.get('rt', 0) else 's_endpgm')
    def stamp(self, i):
        if self.ts:
            self.a('%s s[%d:%d]' % ('s_memrealtime' if self.ts == 2 else 's_memtime', 64 + 2 * i, 65 + 2 * i))
    def flush_stamps(self, n, role_slot_sgpr, tmp):
        if not self.ts: return
        a = self.a
        a('s_waitcnt lgkmcnt(0)')
        a('s_lshl_b32 s62, s%d, 6\ns_add_u32 s62, s62, s24\ns_lshl_b32 s62, s62, 6\ns_add_u32 s62, s62, 0x%x' % (role_slot_sgpr, TS))
        for i in range(n):
            a('v_writelane_b32 v%d, s%d, %d' % (tmp, 64 + 2 * i, i))
        a('v_writelane_b32 v%d, s23, 15' % tmp)
        a('v_mbcnt_lo_u32_b32 v%d, -1, 0\nv_lshlrev_b32 v%d, 2, v%d' % (tmp + 1, tmp + 1, tmp + 1))
        a('s_mov_b64 exec, 0xffff')
        a('buffer_store_dword v%d, v%d, s[4:7], s62 offen' % (tmp, tmp + 1))
        a('s_mov_b64 exec, -1')

def load_weights(a, blocks, sbase, vl16, mid=None):
    n = 0
    for reg, off in blocks:
        a('s_add_u32 s63, s%d, 0x%x' % (sbase, off))
        a('buffer_load_dwordx4 %s, v%d, s[4:7], s63 offen' % (R(reg, 4), vl16))
        a('buffer_load_dwordx4 %s, v%d, s[4:7], s63 offen offset:1024' % (R(reg + 4, 4), vl16))
        n += 2
        if mid and n == 40: mid()
        if n > 48 and n % 8 == 0:
            a('s_waitcnt vmcnt(48)')

def smf(a, d, x, wreg, idx):
    a('v_smfmac_f32_16x16x64_bf16 %s, %s, %s, v%d' % (vr(d, 4), vr(x, 4), R(wreg, 8), idx))
def cvt(a, d, s0, s1):
    a('v_cvt_pk_bf16_f32 v%d, v%d, v%d' % (d, s0, s1))

def gen_chainA(c, w):
    a = c.a
    M = lambda p: 4 * p if p < 3 else 4 * p + 4
    ACC = lambda t: 32 + 4 * t
    KEY0 = [60, 68, 76]
    KEY1 = [8, 0, ACC(3)]
    A2a, A2b, D2a, D2b, TS0, TS1 = 84, 88, 92, 96, 100, 104
    SEL, IDX, VL, VMK0, VMK1, VSW, VSR0, VSR, VPST = 108, 112, 113, 114, 115, 116, 117, 118, 119
    SEL6 = SEL + 2 * (w % 2)
    XKL = 8192 + w * 8192; SB = 40960; NEG = 47616
    kk = lambda p: (2 * w + p) % 7
    a.label('A_w%d' % w)
    a('v_mov_b32 v%d, v1\nv_lshlrev_b32 v%d, 4, v1' % (A2a, VL))
    LN = A2a
    a('s_mul_i32 s26, s25, 0x%x\ns_add_u32 s26, s26, 0x%x' % (MAT, AFR + w * 49 * 2048))
    if c.opts.get('fuse', 1):
        import fused as F
        a('v_and_b32 v85, 7, v1\nv_min_u32 v85, 6, v85\nv_lshlrev_b32 v85, 2, v85\ns_mul_i32 s27, s25, %d\ns_add_u32 s27, s27, 0x%x' % (F.FS, F.FW + 16 * F.FS + 32 * w))
        a('v_mov_b32 v86, 0')
        F.ln_addr(a, 88, 1)
        for t in range(7):
            F.fw_need(c, 'Aw', t + 1, 86, 85, 27)
            F.js(c, 30 + t)
            gr = c.opts.get('greedy', 1)
            l1, l2 = a.newlabel('Ag'), a.newlabel('Ag')
            if t == 4: F.ln_load(a, 88)
            if t < 6:
                if gr: a('v_cmp_gt_u32 vcc, %d, v86\ns_cbranch_vccz %s' % (t + 2, l1))
                F.fw_load(a, 86, 85, 27)
                a.label(l1)
            load_weights(a, [(WREG(t * 7 + p), (t * 7 + kk(p)) * 2048) for p in range(7)], 26, VL)
            if t < 6:
                if gr: a('s_waitcnt vmcnt(%d)\ns_cbranch_vccz %s' % (c.opts.get('gw', 42), l2))
                a('s_waitcnt vmcnt(14)')
                a.label(l2)
        a('s_waitcnt vmcnt(42)')
        F.ln_check(c, 'Ai', 88, LN)
    else:
        load_weights(a, [(WREG(t * 7 + p), (t * 7 + kk(p)) * 2048) for p in range(7) for t in range(7)], 26, VL)
    a('v_and_b32 v0, 15, v%d\nv_lshrrev_b32 v1, 4, v%d\nv_and_b32 v2, 7, v%d\nv_bfe_u32 v3, v%d, 3, 1' % (LN, LN, LN, LN))
    a('v_mov_b32 v4, 0x4444\nv_mov_b32 v5, 0xeeee\nv_cmp_eq_u32 vcc, 1, v3\ns_nop 1\nv_cndmask_b32 v%d, v4, v5, vcc' % IDX)
    a('v_and_b32 v4, 1, v1\nv_lshlrev_b32 v4, 2, v4\nv_sub_u32 v4, v2, v4')
    for dw in range(2):
        a('v_mov_b32 v6, 0')
        a('v_cmp_eq_u32 vcc, %d, v4\nv_mov_b32 v5, 0x3f80\ns_nop 0\nv_cndmask_b32 v6, v6, v5, vcc' % (2 * dw))
        a('v_cmp_eq_u32 vcc, %d, v4\nv_mov_b32 v5, 0x3f800000\ns_nop 0\nv_cndmask_b32 v6, v6, v5, vcc' % (2 * dw + 1))
        a('v_cmp_eq_u32 vcc, 0, v3\ns_nop 1\nv_cndmask_b32 v%d, 0, v6, vcc' % (SEL + dw))
        a('v_cmp_eq_u32 vcc, 1, v3\ns_nop 1\nv_cndmask_b32 v%d, 0, v6, vcc' % (SEL + 2 + dw))
    a('v_lshlrev_b32 v4, 4, v2\nv_lshl_add_u32 v%d, v1, 8, v4' % VMK0)
    a('v_lshrrev_b32 v5, 1, v1\nv_lshl_add_u32 v4, v5, 8, v4')
    a('v_and_b32 v6, 1, v1\nv_cmp_eq_u32 vcc, 1, v6')
    a('v_mov_b32 v7, %d\nv_mov_b32 v8, %d\nv_cndmask_b32 v7, v7, v8, vcc\nv_add_u32 v%d, v4, v7' % ((4 + w // 2) * 1024 + (w % 2) * 128, 6 * 1024 + (w // 2) * 128, VMK1))
    a('v_lshl_add_u32 v4, v6, 2, v5\nv_mul_u32_u24 v4, 208, v4\nv_lshl_add_u32 v4, v0, 2, v4\nv_add_u32 v%d, %d, v4' % (VSW, SB + w * 1664))
    a('v_lshrrev_b32 v4, 5, v%d\nv_and_b32 v9, 31, v%d' % (LN, LN))
    a('v_bfe_u32 v12, v9, 2, 1\nv_and_b32 v13, 2, v9\nv_or_b32 v12, v12, v13\nv_bfe_u32 v13, v9, 3, 1\nv_lshl_or_b32 v12, v13, 2, v12\nv_and_b32 v13, 1, v9\nv_lshl_or_b32 v12, v13, 3, v12')
    a('v_bfe_u32 v14, v9, 1, 1\nv_lshl_or_b32 v13, v13, 1, v14\nv_or_b32 v13, 16, v13')
    a('v_cmp_gt_u32 s[28:29], 20, v9\nv_cmp_gt_u32 vcc, 16, v9\nv_add_u32 v10, %d, v4\nv_mul_u32_u24 v11, 208, v10' % (2 * w))
    a('v_cndmask_b32 v9, v13, v12, vcc')
    a('v_cndmask_b32 v12, 0, v9, s[28:29]\nv_lshl_add_u32 v11, v12, 3, v11\nv_add_u32 v%d, %d, v11' % (VSR, SB))
    a('v_mov_b32 v12, %d\nv_cndmask_b32 v%d, v12, v%d, s[28:29]' % (NEG, VSR0, VSR))
    a('s_and_b32 s27, s25, 1\ns_bfe_u32 s30, s25, 0x10001\ns_lshr_b32 s31, s25, 2')
    a('v_bfe_u32 v12, v9, 2, 1\nv_lshlrev_b32 v12, 8, v12')
    a('v_and_b32 v13, 1, v9\nv_lshl_add_u32 v12, v13, 7, v12')
    a('v_bfe_u32 v14, v9, 1, 1\nv_lshl_add_u32 v12, v14, 3, v12')
    a('v_bfe_u32 v15, v9, 3, 1\nv_lshl_add_u32 v12, v15, 2, v12')
    a('s_lshl_b32 s32, s30, 10\ns_lshl_b32 s33, s27, 9\ns_add_u32 s32, s32, s33\nv_add_u32 v12, s32, v12')
    a('v_lshlrev_b32 v14, 3, v14\nv_lshl_add_u32 v14, v13, 7, v14')
    a('s_lshl_b32 s32, s27, 2\ns_lshl_b32 s33, s30, 8\ns_add_u32 s32, s32, s33\ns_add_u32 s32, s32, 2048\nv_add_u32 v14, s32, v14')
    a('v_cmp_gt_u32 vcc, 16, v9\ns_nop 1\nv_cndmask_b32 v12, v14, v12, vcc\nv_lshl_add_u32 v12, v10, 4, v12')
    a('s_mul_i32 s32, s31, 2560\nv_add_u32 v12, s32, v12\nv_mov_b32 v13, 0x%x\nv_cndmask_b32 v%d, v13, v12, s[28:29]' % (OOB, VPST))
    if w == 0:
        a('v_mov_b32 v4, 0xff800000\nv_mov_b32 v5, v4\nv_mov_b32 v6, %d\nds_write_b64 v6, v[4:5]' % NEG)
    a('s_mov_b64 s[56:57], s[28:29]\ns_mov_b32 s33, 0x%x' % f2u(64.0))
    a('s_mov_b32 s24, 0\ns_mov_b32 s26, 0x%x\ns_mov_b32 s27, 0x%x\ns_mov_b32 s28, 0x%x' % (MEMC, PC, XK + w * 8192))
    def dk(i):
        if i == 0: a('s_mov_b32 m0, %d\ns_add_u32 s29, s28, 4096' % XKL)
        if i == 6: a('s_mov_b32 m0, %d\ns_nop 0' % (XKL + 4096))
        a('buffer_load_dwordx4 v%d, s[4:7], s%d offen offset:%d lds' % (VL, 28 + i // 4, (i % 4) * 1024))
    for i in (0, 1, 2, 3, 6, 7, 4, 5): dk(i)
    a('s_add_u32 s28, s28, 32768')
    def ld_keys():
        a('s_waitcnt vmcnt(0)')
        for i in range(4):
            a('ds_read_b128 %s, v%d offset:%d' % (vr(KEY0[0] + 4 * i, 4), VL, XKL + i * 1024))
    selfp = c.opts.get('selfp', 0)
    if selfp:
        a('v_mov_b32 v0, -1\ns_add_u32 s29, s27, 10240')
        a('buffer_store_dword v0, v%d, s[4:7], s27 offen\nbuffer_store_dword v0, v%d, s[4:7], s29 offen' % (VPST, VPST))
    top = 'A_top%d' % w
    c.rt(2)
    a.label(top)
    ld_keys()
    for r in range(14):
        a('v_mov_b64 %s, 0' % vr(ACC(0) + 2 * r, 2))
    a('s_add_u32 s30, s26, %d\ns_add_u32 s31, s26, %d\ns_waitcnt lgkmcnt(0)' % (kk(0) * 1024, kk(1) * 1024))
    c.stamp(0)
    def wr_m():
        a('ds_write_b128 v%d, %s offset:%d' % (VL, vr(M(0), 4), kk(0) * 1024))
        if w < 3:
            a('ds_write_b128 v%d, %s offset:%d' % (VL, vr(M(1), 4), kk(1) * 1024))
    early = c.opts.get('da', 2) == 1
    c.poll('Apoll', ['buffer_load_dwordx4 %s, v%d, s[4:7], s%d offen sc1' % (vr(M(p), 4), VL, 30 + p) for p in range(2)],
           list(range(8)), A2a, c.opts.get('da', 2), wr_m if early else None)
    c.stamp(1)
    T = lambda t, p: smf(a, ACC(t), M(p), WREG(t * 7 + p), IDX)
    if not early: wr_m()
    nb = c.opts.get('nb', 6)
    for t in range(nb): T(t, 0)
    a('s_waitcnt lgkmcnt(0)\ns_barrier')
    def rdkey(blk, tau, aa):
        dst = (KEY0 if blk == 0 else KEY1)[tau] + 4 * aa
        if tau < 2:
            a('ds_read_b128 %s, v%d offset:%d' % (vr(dst, 4), VL, XKL + (blk * 4 + tau * 2 + aa) * 1024))
        elif blk == 0:
            a('ds_read_b128 %s, v%d offset:%d' % (vr(dst, 4), VMK0, w * 1024 + aa * 128))
        else:
            a('ds_read_b128 %s, v%d offset:%d' % (vr(dst, 4), VMK1, aa * 512))
    RK = lambda *x: (lambda: rdkey(*x))
    RM = lambda p: (lambda: a('ds_read_b128 %s, v%d offset:%d' % (vr(M(p), 4), VL, kk(p) * 1024)))
    def CV(src, dst, h): return lambda: cvt(a, dst + h, src + 2 * h, src + 2 * h + 1)
    def Z(t, h): return lambda: a('v_mov_b64 %s, 0' % vr(ACC(t) + 2 * h, 2))
    def mt(d, src): return lambda: a('v_mfma_f32_16x16x32_bf16 %s, %s, %s, 0' % (vr(d, 4), vr(src, 4), vr(SEL, 4)))
    S = lambda tau, blk: (lambda: smf(a, ACC(tau), TS0 if blk == 0 else TS1, (KEY0 if blk == 0 else KEY1)[tau], IDX))
    DK = lambda i: (lambda: dk(i))
    W = lambda x: (lambda: a(x))
    RM(2)(); RM(3)()
    seq = [(t, 0) for t in range(nb, 7)] + [(t, 1) for t in range(7)]
    f1 = [RM(4), RM(5), RM(6), RK(0, 2, 0), RK(0, 2, 1)]
    for n, (t, p) in enumerate(seq):
        T(t, p)
        if n < len(f1): f1[n]()
    a('s_waitcnt lgkmcnt(6)')
    f2 = [[W('s_waitcnt vmcnt(0)'), RK(1, 1, 0)], [RK(1, 1, 1)], [], [DK(0)], [], [DK(1)], []]
    for t in range(7):
        T(t, 2)
        for f in f2[t]: f()
    a('s_waitcnt lgkmcnt(4)')
    dkt = c.opts.get('dkt', 0)
    fill = [
        [[RK(1, 0, 0)], [RK(1, 0, 1)], [DK(2)], []],
        [[DK(3)], [CV(ACC(0), A2a, 0)], [CV(ACC(0), A2a, 1)], [Z(0, 0)]],
        [[Z(0, 1)], [CV(ACC(1), A2a + 2, 0)], [CV(ACC(1), A2a + 2, 1)], [Z(1, 0), mt(D2a, A2a), W('s_waitcnt lgkmcnt(0)'), DK(6)] + ([DK(4)] if dkt else [])],
        [[Z(1, 1)], [CV(ACC(2), A2b, 0)], [CV(ACC(2), A2b, 1)], [CV(D2a, TS0, 0)]],
        [[CV(D2a, TS0, 1)], [CV(ACC(3), A2b + 2, 0)], [CV(ACC(3), A2b + 2, 1)], [Z(2, 0), mt(D2b, A2b), DK(7)] + ([DK(5)] if dkt else [])],
        [[Z(2, 1)], [CV(ACC(4), A2a, 0)], [CV(ACC(4), A2a, 1)], [CV(D2b, TS0 + 2, 0)]],
        [[CV(D2b, TS0 + 2, 1)], [CV(ACC(5), A2a + 2, 0)], [CV(ACC(5), A2a + 2, 1)], [RK(1, 2, 0)]],
    ]
    for t in range(7):
        for j in range(4):
            T(t, 3 + j)
            for f in fill[t][j]: f()
    c.stamp(2)
    mt(D2a, A2a)()
    RK(1, 2, 1)()
    S(0, 0)()
    CV(ACC(6), A2b, 0)(); CV(ACC(6), A2b, 1)()
    a('s_nop 1')
    a('v_mfma_f32_16x16x16_bf16 %s, %s, %s, 0' % (vr(D2b, 4), vr(A2b, 2), vr(SEL6, 2)))
    CV(D2a, TS1, 0)()
    S(1, 0)()
    CV(D2a, TS1, 1)()
    S(2, 0)()
    CV(D2b, TS1 + 2, 0)(); CV(D2b, TS1 + 2, 1)()
    a('s_waitcnt lgkmcnt(0)\ns_nop 0')
    S(0, 1)(); S(1, 1)(); S(2, 1)()
    col = [0, 64, 128]
    for tau in range(3):
        r = ACC(tau)
        if tau == 2: a('s_nop 0')
        a('v_permlane32_swap_b32 v%d, v%d\nv_permlane32_swap_b32 v%d, v%d' % (r, r + 1, r + 2, r + 3))
        a('v_add_f32 v%d, v%d, v%d\nv_add_f32 v%d, v%d, v%d' % (r, r, r + 1, r + 2, r + 2, r + 3))
        a('ds_write2_b32 v%d, v%d, v%d offset0:%d offset1:%d' % (VSW, r, r + 2, col[tau] // 4, col[tau] // 4 + 104))
    a('s_waitcnt lgkmcnt(0)\ns_barrier')
    c.stamp(3)
    q = 44
    a('ds_read_b64 %s, v%d' % (vr(q, 2), VSR0))
    for p in range(1, 4):
        a('ds_read_b64 %s, v%d offset:%d' % (vr(q + 2 * p, 2), VSR, p * 1664))
    if not dkt: dk(4); dk(5)
    a('s_waitcnt lgkmcnt(2)')
    a('v_add_f32 v%d, v%d, v%d\nv_add_f32 v%d, v%d, v%d' % (q, q, q + 2, q + 1, q + 1, q + 3))
    a('s_waitcnt lgkmcnt(0)')
    a('v_add_f32 v%d, v%d, v%d\nv_add_f32 v%d, v%d, v%d' % (q + 4, q + 4, q + 6, q + 5, q + 5, q + 7))
    a('v_add_f32 v%d, v%d, v%d\nv_add_f32 v%d, v%d, v%d' % (q + 4, q, q + 4, q + 5, q + 1, q + 5))
    def reduce32(op, r, tmp):
        for sh in (8, 4, 2, 1):
            a('s_nop 1\n%s_dpp v%d, v%d, v%d row_ror:%d row_mask:0xf bank_mask:0xf' % (op, r, r, r, sh))
        a('v_mov_b32 v%d, v%d\ns_nop 1\nv_permlane16_swap_b32 v%d, v%d\n%s v%d, v%d, v%d' % (tmp, r, tmp, r, op, r, r, tmp))
    def truemax():
        a('v_max_f32 v%d, v%d, v%d' % (q + 2, q + 4, q + 5))
        reduce32('v_max_f32', q + 2, q + 3)
        a('v_sub_f32 v%d, v%d, v%d\nv_sub_f32 v%d, v%d, v%d' % (q, q + 4, q + 2, q + 1, q + 5, q + 2))
        a('v_exp_f32 v%d, v%d\nv_exp_f32 v%d, v%d\ns_nop 0' % (q, q, q + 1, q + 1))
    fast = c.opts.get('fast', 1)
    if fast:
        a('v_max_f32 v%d, |v%d|, |v%d|' % (q + 2, q + 4, q + 5))
        a('v_exp_f32 v%d, v%d\nv_cmp_lt_f32 vcc, s33, v%d\nv_exp_f32 v%d, v%d' % (q, q + 4, q + 2, q + 1, q + 5))
        a('s_and_b64 vcc, vcc, s[56:57]\ns_cbranch_scc1 A_max%d' % w)
        a.label('A_sum%d' % w)
    else:
        truemax()
    a('v_add_f32 v%d, v%d, v%d' % (q + 2, q, q + 1))
    reduce32('v_add_f32', q + 2, q + 3)
    a('v_rcp_f32 v%d, v%d\ns_nop 0' % (q + 2, q + 2))
    a('v_mul_f32 v%d, v%d, v%d\nv_mul_f32 v%d, v%d, v%d' % (q, q, q + 2, q + 1, q + 1, q + 2))
    cvt(a, q, q, q + 1)
    a('v_min_u32 v%d, -2, v%d' % (q, q))
    a('buffer_store_dword v%d, v%d, s[4:7], s27 offen' % (q, VPST))
    c.stamp(4)
    if c.opts.get('ackw', 0):
        a('s_waitcnt vmcnt(0)')
        c.stamp(5)
    if selfp:
        a('s_add_u32 s29, s27, 20480\ns_cmp_lt_u32 s24, 61\ns_cselect_b32 s29, s29, 0x%x\nv_mov_b32 v%d, -1' % (DUMMY, q + 1))
        a('buffer_store_dword v%d, v%d, s[4:7], s29 offen' % (q + 1, VPST))
    c.flush_stamps(6, 59, q + 4)
    a('s_add_u32 s24, s24, 1\ns_add_u32 s26, s26, 7168\ns_add_u32 s27, s27, 10240\ns_add_u32 s28, s28, 32768')
    a('s_cmp_lt_u32 s24, 63\ns_cbranch_scc1 %s' % top)
    c.end()
    if fast:
        a.label('A_max%d' % w)
        truemax()
        a('s_branch A_sum%d' % w)

def gen_chainB(c):
    a = c.a
    M = lambda k: 4 * k
    UU = lambda q, tau: 28 + 16 * q + 8 * tau
    VA = lambda i: (60, 64, 116)[i]
    VMR = lambda tau: 68 + 8 * tau
    ST = [84, 92]
    IDX, VL, VP0, VP1, VPM, VRW, VRR, VMS, VFL, TMP = 100, 101, 102, 103, 104, 105, 106, 107, 108, 109
    RB = 8192; WL = 16384
    a.label('B_role')
    LN = 110
    a('v_mov_b32 v%d, v1\nv_lshlrev_b32 v%d, 4, v1' % (LN, VL))
    a('s_mul_i32 s26, s20, 0x%x\ns_mul_i32 s27, s25, %d\ns_add_u32 s26, s26, s27\ns_add_u32 s26, s26, 0x%x' % (4 * MAT, 2 * 7 * 2048, BFR))
    tiles = [(2 * q + hp, tau) for q in range(2) for tau in range(2) for hp in range(2)]
    fuse = c.opts.get('fuse', 1)
    mid = None
    if fuse:
        import fused as F
        a('v_and_b32 v85, 7, v1\nv_min_u32 v85, 6, v85\nv_and_b32 v86, 8, v1\nv_add_u32 v85, v85, v86\nv_lshrrev_b32 v86, 4, v1\nv_mul_u32_u24 v86, %d, v86\nv_lshl_add_u32 v85, v85, 2, v86' % F.FS)
        a('s_mul_i32 s27, s20, %d\ns_and_b32 s28, s25, 1\ns_lshl_b32 s28, s28, 6\ns_add_u32 s27, s27, s28\ns_add_u32 s27, s27, 0x%x' % (4 * F.FS, F.FW))
        a('s_lshr_b32 s28, s25, 1\ns_lshl_b32 s29, s20, 1\ns_sub_u32 s28, s28, s29\ns_cselect_b32 s29, 8, 1\ns_add_u32 s28, s28, s29')
        a('v_mov_b32 v86, 0')
        F.fw_need(c, 'Bw', 's28', 86, 85, 27)
        if 30 <= c.opts.get('jst', 0) < 40: c.rt(1, False)
        mid = lambda: a('buffer_load_dword v87, off, s[16:19], 0 offset:%d sc1' % F.I1)
    a('s_mul_i32 s34, s20, 14336\ns_add_u32 s34, s34, %d' % WL)
    hl, tau = tiles[7]
    for i in range(14):
        a('s_add_u32 m0, s34, %d\ns_add_u32 s63, s26, 0x%x' % (i * 1024, hl * MAT + tau * 7 * 2048 + i * 1024))
        a('buffer_load_dwordx4 v%d, s[4:7], s63 offen lds' % VL)
    load_weights(a, [(WREG(tt * 7 + k), tiles[tt][0] * MAT + (tiles[tt][1] * 7 + k) * 2048) for tt in range(7) for k in range(7)], 26, VL, mid)
    if fuse: F.check_word(c, 'Bi', F.I1, 32, 87)
    a('v_and_b32 v0, 15, v%d\nv_lshrrev_b32 v1, 4, v%d\nv_and_b32 v2, 7, v%d\nv_bfe_u32 v3, v%d, 3, 1' % (LN, LN, LN, LN))
    a('v_mov_b32 v4, 0x4444\nv_mov_b32 v5, 0xeeee\nv_cmp_eq_u32 vcc, 1, v3\ns_nop 1\nv_cndmask_b32 v%d, v4, v5, vcc' % IDX)
    a('v_lshrrev_b32 v4, 1, v1\nv_lshlrev_b32 v4, 8, v4\nv_lshl_add_u32 v4, v0, 4, v4\nv_add_u32 v%d, 2048, v4' % VPM)
    a('s_lshl_b32 s27, s20, 11\ns_add_u32 s28, s27, 1024\ns_min_u32 s28, s28, 6144')
    a('v_add_u32 v%d, s27, v%d\nv_add_u32 v%d, s28, v%d' % (VP0, VL, VP1, VL))
    a('v_and_b32 v6, 1, v1\nv_lshrrev_b32 v5, 1, v1\nv_lshl_add_u32 v4, v6, 2, v5\nv_mul_u32_u24 v4, 144, v4\nv_lshl_add_u32 v4, v0, 2, v4')
    a('s_mul_i32 s27, s20, 1152\ns_add_u32 s27, s27, %d\nv_add_u32 v%d, s27, v4' % (RB, VRW))
    a('v_bfe_u32 v4, v%d, 2, 3\nv_and_b32 v5, 3, v%d\nv_mul_u32_u24 v6, 144, v4\nv_lshl_add_u32 v6, v5, 3, v6' % (LN, LN))
    a('s_lshl_b32 s27, s20, 5\ns_add_u32 s27, s27, %d\nv_add_u32 v%d, s27, v6' % (RB, VRR))
    a('s_lshr_b32 s27, s25, 1\ns_lshl_b32 s27, s27, 10\ns_and_b32 s28, s25, 1\ns_lshl_b32 s28, s28, 7\ns_add_u32 s27, s27, s28\ns_lshl_b32 s28, s20, 8\ns_add_u32 s27, s27, s28')
    a('v_lshlrev_b32 v6, 2, v%d\nv_add_u32 v6, s27, v6\nv_mov_b32 v7, 0x%x\nv_cmp_gt_u32 vcc, 32, v%d\ns_nop 1\nv_cndmask_b32 v%d, v7, v6, vcc' % (LN, OOB, LN, VMS))
    a('s_lshl_b32 s27, s20, 4\nv_lshlrev_b32 v6, 6, v%d\nv_add_u32 v%d, s27, v6' % (LN, VFL))
    a('v_add_u32 v%d, s34, v%d' % (LN, VL))
    VWL = LN
    a('s_mov_b32 s24, 0\ns_mov_b32 s26, 0x%x\ns_mov_b64 s[60:61], 0' % MEMC)
    a('s_mul_i32 s27, s20, 2560\ns_add_u32 s27, s27, 0x%x' % PC)
    a('s_mul_i32 s28, s20, %d\ns_lshl_b32 s29, s25, 11\ns_add_u32 s28, s28, s29\ns_add_u32 s28, s28, 0x%x' % (4 * 28 * 1024, UB))
    a('s_mov_b32 s35, 0x%x' % FLG_U)
    selfp = c.opts.get('selfp', 0)
    if selfp:
        a('v_mov_b32 v0, -1\ns_add_u32 s31, s26, 7168\ns_add_u32 s32, s26, 14336')
        a('buffer_store_dword v0, v%d, s[4:7], s31 offen\nbuffer_store_dword v0, v%d, s[4:7], s32 offen' % (VMS, VMS))
    c.rt(2)
    a.label('B_top')
    c.stamp(0)
    l = c.spin_head('Bpoll')
    a('buffer_load_dwordx4 %s, v%d, s[4:7], s26 offen sc1' % (vr(ST[0], 4), VP0))
    a('buffer_load_dwordx4 %s, v%d, s[4:7], s26 offen sc1' % (vr(ST[0] + 4, 4), VP1))
    a('s_waitcnt vmcnt(0)')
    c.check_poison(list(range(ST[0], ST[0] + 8)), TMP)
    a('s_cbranch_vccnz %s' % l)
    c.stamp(1)
    a('ds_write_b128 v%d, %s\nds_write_b128 v%d, %s' % (VP0, vr(ST[0], 4), VP1, vr(ST[0] + 4, 4)))
    a('s_bitcmp1_b64 s[60:61], s24\ns_cbranch_scc1 B_uok')
    l = c.spin_head('Bufl')
    a('buffer_load_dwordx4 v[28:31], v%d, s[4:7], s35 offen sc1\ns_waitcnt vmcnt(0)' % VFL)
    a('v_min_u32 v28, v28, v29\nv_min3_u32 v28, v28, v30, v31\nv_cmp_ne_u32 s[60:61], 0, v28\ns_nop 1')
    a('s_bitcmp0_b64 s[60:61], s24\ns_cbranch_scc1 %s' % l)
    a.label('B_uok')
    def ldu(i):
        q, hp, tau = i // 4, (i // 2) % 2, i % 2
        a('s_add_u32 s31, s28, %d' % ((2 * q + hp) * 28 * 1024))
        a('buffer_load_dwordx4 %s, v%d, s[4:7], s31 offen offset:%d%s' % (vr(UU(q, tau) + 4 * hp, 4), VL, tau * 1024, '' if c.opts.get('uplain', 0) else ' sc1'))
    ldu(0); ldu(1)
    for r in range(4): a('v_mov_b64 %s, 0' % vr(60 + 2 * r, 2))
    a('s_waitcnt lgkmcnt(0)\ns_barrier')
    c.stamp(5)
    for k in range(7):
        a('ds_read_b128 %s, v%d offset:%d' % (vr(M(k), 4), VL, k * 1024))
    V7 = 112
    acc = lambda tt: V7 if tt == 7 else VA(tt % 3)
    def post(tt):
        hl, tau = tiles[tt]
        return [lambda h=h: cvt(a, VMR(tau) + 2 * hl + h, acc(tt) + 2 * h, acc(tt) + 2 * h + 1) for h in range(2)]
    def zer(x):
        return [lambda r=r: a('v_mov_b64 %s, 0' % vr(x + 2 * r, 2)) for r in range(2)]
    def ldw(k, h):
        return lambda: a('ds_read_b128 %s, v%d offset:%d' % (vr(ST[k % 2] + 4 * h, 4), VWL, k * 2048 + 1024 * h))
    seq = [(tt, k) for k in range(7) for tt in range(2)] + [(tt, k) for tt in range(2, 7) for k in range(7)]
    for k in range(7):
        seq.insert(15 + 6 * k, (7, k))
    fl = {}
    def put(pos, fs):
        for f in fs:
            while pos in fl: pos += 1
            fl[pos] = f
    pos7 = [seq.index((7, k)) for k in range(7)]
    put(8, [ldw(0, 0), ldw(0, 1), ldw(1, 0), ldw(1, 1)])
    put(12, zer(V7))
    for k in range(5): put(pos7[k], [ldw(k + 2, 0), ldw(k + 2, 1)])
    put(0, zer(VA(2)))
    for tt in range(6):
        last = max(i for i, x in enumerate(seq) if x[0] == tt)
        put(last + 2, post(tt) + (zer(acc(tt)) if tt < 4 else []))
    put(pos7[6] + 2, post(7))
    for i in range(2, 8): put(i, [lambda i=i: ldu(i)])
    nld = 0
    for j, (tt, k) in enumerate(seq):
        if tt == 0: a('s_waitcnt lgkmcnt(%d)' % (6 - k + nld))
        if tt < 7:
            smf(a, acc(tt), M(k), WREG(tt * 7 + k), IDX)
        else:
            a('s_waitcnt lgkmcnt(%d)' % (nld - 2 * (k + 1)))
            smf(a, V7, M(k), ST[k % 2], IDX)
        if j in fl:
            n0 = len(a.lines)
            fl[j]()
            nld += sum(1 for l in a.lines[n0:] if l.startswith('ds_read'))
    assert max(fl) < len(seq), max(fl)
    c.stamp(6)
    for f in zer(VA(1)) + zer(VA(2)): f()
    a('s_nop 5')
    for f in post(6): f()
    c.stamp(2)
    if c.opts.get('bgw', 0):
        a('s_waitcnt vmcnt(0)')
        c.stamp(7)
    pv = c.opts.get('ptest', 0)
    if pv:
        if pv & 1: a('buffer_load_dwordx4 v[8:11], v%d, s[4:7], s27 offen sc1' % VPM)
        if pv & 2: a('buffer_load_dwordx4 v[0:3], v%d, s[4:7], s27 offen sc1' % VL)
        if pv & 4: a('buffer_load_dwordx4 v[4:7], v%d, s[4:7], s27 offen offset:1024 sc1' % VL)
        a('s_waitcnt vmcnt(0)')
        c.stamp(7)
    c.poll('BpollP', ['buffer_load_dwordx4 v[8:11], v%d, s[4:7], s27 offen sc1' % VPM,
                      'buffer_load_dwordx4 v[0:3], v%d, s[4:7], s27 offen sc1' % VL,
                      'buffer_load_dwordx4 v[4:7], v%d, s[4:7], s27 offen offset:1024 sc1' % VL], list(range(12)), TMP, c.opts.get('db', 2))
    c.stamp(3)
    for tau in range(2):
        smf(a, VA(1 + tau), 8, VMR(tau), IDX)
        smf(a, VA(1 + tau), 0, UU(0, tau), IDX)
        smf(a, VA(1 + tau), 4, UU(1, tau), IDX)
    for tau in range(2):
        r = VA(1 + tau)
        if tau == 1: a('s_nop 2')
        a('v_permlane32_swap_b32 v%d, v%d\nv_permlane32_swap_b32 v%d, v%d' % (r, r + 1, r + 2, r + 3))
        a('v_add_f32 v%d, v%d, v%d\nv_add_f32 v%d, v%d, v%d' % (r, r, r + 1, r + 2, r + 2, r + 3))
        a('ds_write2_b32 v%d, v%d, v%d offset0:%d offset1:%d' % (VRW, r, r + 2, 16 * tau, 16 * tau + 72))
    a('s_add_u32 s26, s26, 7168')
    a('s_waitcnt lgkmcnt(0)\ns_barrier')
    for p in range(4):
        a('ds_read_b64 %s, v%d offset:%d' % (vr(12 + 2 * p, 2), VRR, p * 1152))
    a('s_waitcnt lgkmcnt(2)\nv_add_f32 v12, v12, v14\nv_add_f32 v13, v13, v15')
    a('s_waitcnt lgkmcnt(0)\nv_add_f32 v16, v16, v18\nv_add_f32 v17, v17, v19\nv_add_f32 v12, v12, v16\nv_add_f32 v13, v13, v17')
    cvt(a, 12, 12, 13)
    a('v_min_u32 v12, -2, v12')
    a('buffer_store_dword v12, v%d, s[4:7], s26 offen' % VMS)
    c.stamp(4)
    if c.opts.get('ackw', 0):
        a('s_waitcnt vmcnt(0)')
        c.stamp(7)
    if selfp:
        a('s_add_u32 s31, s26, 14336\ns_cmp_lt_u32 s24, 61\ns_cselect_b32 s31, s31, 0x%x\nv_mov_b32 v13, -1' % DUMMY)
        a('buffer_store_dword v13, v%d, s[4:7], s31 offen' % VMS)
    c.flush_stamps(8, 59, 14)
    a('s_add_u32 s24, s24, 1\ns_add_u32 s27, s27, 10240\ns_add_u32 s28, s28, 0x%x' % USEG)
    a('s_cmp_lt_u32 s24, 63\ns_cbranch_scc1 B_top')
    if c.opts.get('dl', 1):
        a('s_mov_b32 s26, 0x%x\nbuffer_store_dword v12, v%d, s[4:7], s26 offen sc1' % (MEMX + 63 * 7168, VMS))
    c.end()

def gen_relay(c):
    a = c.a
    a.label('R_role')
    if c.opts.get('fuse', 1):
        import fused as F
        F.wait_word(c, 'Ri', F.I1, 32, 3)
    nr = c.opts.get('nr', 2); dl = c.opts.get('dl', 1)
    a('s_cmp_ge_u32 s20, %d\ns_cbranch_scc1 M_exit' % nr)
    a('v_lshlrev_b32 v2, 4, v1\ns_add_u32 s24, s20, 1\ns_mul_i32 s26, s24, 7168\ns_add_u32 s27, s26, 0x%x\ns_add_u32 s26, s26, 0x%x' % (MEMX, MEMC))
    a.label('R_top')
    a('s_add_u32 s28, s26, 4096\ns_add_u32 s29, s27, 4096')
    l = c.spin_head('Rp0')
    a('buffer_load_dword v3, off, s[4:7], s26 sc1\ns_waitcnt vmcnt(0)\nv_cmp_eq_u32 vcc, -1, v3\ns_cbranch_vccnz %s' % l)
    l = c.spin_head('Rpoll')
    for k in range(7):
        a('buffer_load_dwordx4 %s, v2, s[4:7], s%d offen offset:%d sc1' % (vr(4 + 4 * k, 4), 26 if k < 4 else 28, (k % 4) * 1024))
    a('s_waitcnt vmcnt(0)')
    c.check_poison(list(range(4, 32)), 3)
    a('s_cbranch_vccnz %s' % l)
    for k in range(7):
        a('buffer_store_dwordx4 %s, v2, s[4:7], s%d offen offset:%d sc1' % (vr(4 + 4 * k, 4), 27 if k < 4 else 29, (k % 4) * 1024))
    a('s_add_u32 s24, s24, %d\ns_add_u32 s26, s26, %d\ns_add_u32 s27, s27, %d' % (nr, 7168 * nr, 7168 * nr))
    a('s_waitcnt vmcnt(0)')
    a('s_cmp_lt_u32 s24, %d\ns_cbranch_scc1 R_top' % (64 - dl))
    c.end()

def gen_prefetch(c):
    a = c.a
    a.label('F_role')
    if c.opts.get('fuse', 1):
        import fused as F
        F.ln_wait1(c, 'Fi', 4)
    a('v_lshlrev_b32 v2, 4, v1\ns_lshl_b32 s27, s20, 13\ns_add_u32 s27, s27, 0x%x\ns_mov_b32 s24, 0\ns_mov_b32 s26, 0x%x' % (XK + 32768, MEMC))
    a('s_and_b32 s29, s20, 1\ns_lshl_b32 s29, s29, 13\nv_lshl_add_u32 v40, v1, 7, s29')
    a('s_movk_i32 s30, 7168\ns_mov_b32 s31, 0x%x\ns_cmp_lt_u32 s20, 2\ns_cselect_b32 s30, 10240, s30\ns_cselect_b32 s31, 0x%x, s31\ns_sub_u32 s29, s30, 128' % (MEMC + 7168, PC))
    a('v_min_u32 v40, s29, v40')
    a.label('F_top')
    a('buffer_load_dword v41, v40, s[4:7], s31 offen sc1\ns_add_u32 s31, s31, s30')
    a('s_add_u32 s28, s27, 4096')
    for k in range(8):
        a('buffer_load_dwordx4 %s, v2, s[4:7], s%d offen offset:%d' % (vr(4 + 4 * k, 4), 27 if k < 4 else 28, (k % 4) * 1024))
    l = c.spin_head('Fpoll')
    a('buffer_load_dword v3, off, s[4:7], s26 sc1\ns_waitcnt vmcnt(0)\nv_cmp_eq_u32 vcc, -1, v3\ns_cbranch_vccnz %s' % l)
    a('s_add_u32 s24, s24, 1\ns_add_u32 s26, s26, 7168\ns_add_u32 s27, s27, 32768')
    a('s_cmp_lt_u32 s24, 63\ns_cbranch_scc1 F_top')
    c.end()

from workers import gen_workers

def gen_main(a, opts):
    c = Ctx(a, opts)
    a.label('main_kernel')
    c.rt(0, False)
    a('s_load_dwordx2 s[36:37], s[0:1], 0')
    a('s_load_dwordx8 s[40:47], s[0:1], 64')
    a('s_load_dwordx2 s[48:49], s[0:1], 96')
    fuse = opts.get('fuse', 1)
    if fuse:
        import fused as F
        a('s_load_dwordx4 s[72:75], s[0:1], 0\ns_load_dwordx8 s[76:83], s[0:1], 16')
    a('v_lshrrev_b32 v2, 6, v0\nv_and_b32 v1, 63, v0\ns_nop 0\nv_readfirstlane_b32 s20, v2')
    a('s_getreg_b32 s21, hwreg(HW_REG_XCC_ID, 0, 4)')
    a('s_mov_b32 s23, 0x100000')
    a('s_waitcnt lgkmcnt(0)')
    srd(a, 4, 48, WS_BYTES)
    srd(a, 16, 46, 256)
    a('s_cmp_ge_u32 s21, 8\ns_cbranch_scc1 M_exit')
    if fuse: a('s_cmp_ge_u32 s2, 256\ns_cbranch_scc1 M_end')
    a('s_cmp_lg_u32 s20, 0\ns_cbranch_scc1 M_tk')
    tk = opts.get('tk', 0)
    if tk:
        a('s_lshl_b32 s22, s21, 8\ns_add_u32 s22, s22, 0x%x\nv_mov_b32 v255, 1\ns_mov_b64 exec, 1' % (FLG_M + 1024))
    else:
        a('s_lshl_b32 s22, s21, 4\nv_mov_b32 v255, 1\ns_mov_b64 exec, 1')
    a('buffer_atomic_add v255, off, %s, s22 sc0%s\ns_mov_b64 exec, -1' % ('s[4:7]' if tk else 's[16:19]', ' sc1' if tk == 2 else ''))
    a.label('M_tk')
    if fuse:
        a('s_and_b32 s65, s2, 7\ns_lshr_b32 s66, s2, 3\ns_cmp_lg_u32 s65, 0\ns_cbranch_scc1 J_role')
        F.gen_ln(c)
    else:
        a('s_waitcnt vmcnt(0)')
    a.label('M_roles')
    a('v_mov_b32 v3, 0\ns_cmp_lg_u32 s20, 0\ns_cbranch_scc1 M_t2\ns_mov_b64 exec, 1\nds_write_b32 v3, v255\ns_mov_b64 exec, -1')
    a.label('M_t2')
    a('s_waitcnt lgkmcnt(0)\ns_barrier\nds_read_b32 v2, v3\ns_waitcnt lgkmcnt(0)\nv_readfirstlane_b32 s22, v2\ns_barrier')
    a('s_mov_b32 s58, s22')
    if opts.get('perm', 0):
        a('s_lshl_b32 s26, s21, 2\ns_lshr_b32 s21, 0x%s, s26\ns_and_b32 s21, s21, 7' % opts['perm'])
    a('s_cmp_ge_u32 s22, 32\ns_cbranch_scc1 M_exit')
    if not fuse: c.rt(1, False)
    a('s_lshl_b32 s59, s21, 5\ns_add_u32 s59, s59, s22\ns_lshl_b32 s59, s59, 2\ns_add_u32 s59, s59, s20\ns_and_b32 s59, s59, 127')
    a('s_cmp_lg_u32 s21, 0\ns_cbranch_scc1 W_roles')
    a('s_cmp_eq_u32 s22, 30\ns_cbranch_scc1 R_role')
    a('s_cmp_eq_u32 s22, 31\ns_cbranch_scc1 %s' % ('F_role' if opts.get('pref', 1) else 'M_exit'))
    a('s_sub_u32 s25, s22, 16\ns_cmp_ge_u32 s22, 16\ns_cbranch_scc1 B_role')
    a('s_mov_b32 s25, s22')
    for w in range(1, 4):
        a('s_cmp_eq_u32 s20, %d\ns_cbranch_scc1 A_w%d' % (w, w))
    for w in range(4):
        gen_chainA(c, w)
    a.label('M_exit')
    if opts.get('rt', 0):
        c.rt(3)
        a('s_lshl_b32 s62, s21, 5\ns_add_u32 s62, s62, s58\ns_lshl_b32 s62, s62, 2\ns_add_u32 s62, s62, s20\ns_lshl_b32 s62, s62, 4\ns_add_u32 s62, s62, 0x%x' % (TS + 0x80000))
        a('v_mov_b32 v0, s90\nv_mov_b32 v1, s92\nv_mov_b32 v2, s94\nv_mov_b32 v3, s96\n' + ('s_and_b32 s2, s2, 7\nv_mov_b32 v2, s2\n' if opts.get('xid') else '') + 's_mov_b64 exec, 1\nbuffer_store_dwordx4 v[0:3], off, s[4:7], s62')
    if opts.get('dbgt', 0):
        a('s_cmp_lg_u32 s21, 0\ns_cbranch_scc1 D_1\ns_cmp_ge_u32 s58, 30\ns_cbranch_scc1 M_end')
        a('buffer_atomic_umax v0, off, s[16:19], 0 offset:4\nbuffer_atomic_umax v2, off, s[16:19], 0 offset:8\nbuffer_atomic_umax v3, off, s[16:19], 0 offset:12\ns_branch M_end')
        a.label('D_1')
        a('s_lshl_b32 s62, s21, 2\nv_not_b32 v0, v0\ns_cmp_ge_u32 s21, 6\ns_cbranch_scc1 D_2\ns_cmp_lg_u32 s21, 1\ns_cbranch_scc1 M_end')
        a('buffer_atomic_umax v0, off, s[16:19], 0 offset:36\ns_branch M_end')
        a.label('D_2')
        a('buffer_atomic_umax v3, off, s[16:19], s62')
    a.label('M_end')
    a('s_endpgm')
    gen_chainB(c)
    gen_relay(c)
    gen_prefetch(c)
    gen_workers(c)
    if fuse: F.gen_jobs(c)
```

```python
from asm import *
from layout import *
from prep import srd, f2u

LOG2E = 1.4426950408889634
ACC = lambda t, mt: 4 * (2 * t + mt)
XS = lambda b, mt: 56 + 8 * b + 4 * mt
VL, VX = 104, 105

def mfma(a, d, x, y, c=None):
    a('v_mfma_f32_16x16x32_bf16 %s, %s, %s, %s' % (R(d, 4), R(x, 4), R(y, 4), '0' if c is None else R(c, 4)))

def idx14(a, dst0, n, rowbytes):
    a('s_movk_i32 s27, 4682')
    for i in range(n):
        a('v_add_u32 v2, %d, v1' % (64 * i))
        a('v_mul_u32_u24 v3, s27, v2\nv_lshrrev_b32 v3, 16, v3')
        a('v_mul_u32_u24 v4, 14, v3\nv_sub_u32 v4, v2, v4')
        a('v_mul_u32_u24 v3, %d, v3\nv_lshl_add_u32 v%d, v4, 4, v3' % (rowbytes, dst0 + i))

def dma_x(a):
    a('s_mov_b32 m0, s28\ns_add_u32 s63, s27, 4096')
    for i in range(4):
        a('buffer_load_dwordx4 v%d, s[4:7], s27 offen offset:%d lds' % (VL, i * 1024))
    a('s_add_u32 m0, s28, 4096\ns_nop 0')
    for i in range(3):
        a('buffer_load_dwordx4 v%d, s[4:7], s63 offen offset:%d lds' % (VL, i * 1024))

def gemm_setup(a, flag0):
    a('s_mul_i32 s27, s24, 28672\ns_mul_i32 s28, s20, 7168\ns_add_u32 s27, s27, s28\ns_add_u32 s27, s27, 0x%x' % XP)
    dma_x(a)
    a('v_mov_b32 v%d, v%d' % (VX, VL))
    a('s_lshl_b32 s30, s24, 6\ns_add_u32 s30, s30, s%d\ns_mov_b32 s31, 0x%x' % (flag0, FLG_M))

def gemm_loop(c, name, step, wA, epilogue, done='M_exit'):
    from mainker import WREG
    a = c.a
    c.rt(2)
    a.label(name + '_top')
    a('s_waitcnt vmcnt(0)\ns_barrier')
    a('s_cmp_lg_u32 s20, 0\ns_cbranch_scc1 %s_nf' % name)
    a('v_mov_b32 v56, 1\ns_mov_b64 exec, 1\nbuffer_store_dword v56, off, s[4:7], s31 sc1\ns_mov_b64 exec, -1')
    a.label(name + '_nf')
    a('s_cmp_ge_u32 s24, 64\ns_cbranch_scc1 %s' % done)
    a('s_add_u32 s27, s27, %d\ns_xor_b32 s28, s28, 32768' % (28672 * step))
    a('s_cmp_ge_u32 s24, %d\ns_cbranch_scc1 %s_nd' % (64 - step, name))
    dma_x(a)
    a.label(name + '_nd')
    c.ws(0)
    def rd(ks):
        for mt in range(2):
            a('ds_read_b128 %s, v%d offset:%d' % (vr(XS(ks % 2, mt), 4), VX, (mt * 14 + ks) * 1024))
    rd(0)
    for ks in range(14):
        if ks < 13: rd(ks + 1)
        a('s_waitcnt lgkmcnt(%d)' % (2 if ks < 13 else 0))
        for t in range(7):
            for mt in range(2):
                wr = WREG(t * 7 + ks // 2) + 4 * (ks % 2)
                x = XS(ks % 2, mt)
                mfma(a, ACC(t, mt), wr if wA else x, x if wA else wr, None if ks == 0 else ACC(t, mt))
    a('v_xor_b32 v%d, 32768, v%d\ns_nop 6' % (VX, VX))
    epilogue()
    a('s_mov_b32 s31, s30\ns_add_u32 s30, s30, %d\ns_add_u32 s24, s24, %d' % (64 * step, step))
    a('s_branch %s_top' % name)

def gen_RU(c):
    from mainker import WREG, load_weights, cvt
    a = c.a
    a.label('RU_role')
    a('s_lshr_b32 s25, s22, 2\ns_and_b32 s24, s22, 3')
    if c.opts.get('fuse', 1):
        import fused as F
        F.wait_all(c, 'Uw', 's_mov_b32 s26, s25')
    a('s_lshl_b32 s33, s25, 2\ns_add_u32 s33, s33, 0x%x' % FLG_U)
    a('s_mul_i32 s26, s25, 0x%x\ns_mul_i32 s29, s20, %d\ns_add_u32 s26, s26, s29\ns_add_u32 s26, s26, 0x%x' % (MAT, 49 * 2048, BFR))
    if c.opts.get('fuse', 1):
        F.ln_addr(a, 4, 1)
        load_weights(a, [(WREG(b), b * 2048) for b in range(45)], 26, VL, lambda: F.ln_load(a, 4))
        F.ln_check(c, 'Ul', 4, 1)
        gemm_setup(a, 33)
        load_weights(a, [(WREG(b), b * 2048) for b in range(45, 49)], 26, VL)
    else:
        gemm_setup(a, 33)
        load_weights(a, [(WREG(b), b * 2048) for b in range(49)], 26, VL)
    a('s_mul_i32 s29, s24, 0x%x\ns_mul_i32 s32, s25, 28672\ns_add_u32 s29, s29, s32\ns_mul_i32 s32, s20, 7168\ns_add_u32 s29, s29, s32\ns_add_u32 s29, s29, 0x%x' % (USEG, UB))
    def epi():
        a('s_add_u32 s32, s29, 4096')
        for t in range(7):
            o = 72 + 4 * t
            for q in range(4):
                s = ACC(t, q // 2) + 2 * (q % 2)
                cvt(a, o + q, s, s + 1)
            a('buffer_store_dwordx4 %s, v%d, s[4:7], s%d offen offset:%d sc1' % (vr(o, 4), VL, 29 if t < 4 else 32, (t % 4) * 1024))
        a('s_add_u32 s29, s29, 0x%x' % (4 * USEG))
        c.ws(3); c.wflush(3, 25, 56)
    gemm_loop(c, 'RU', 4, False, epi, 'RV_role')
    from mainker import smf, OOB
    M = lambda k: 28 + 4 * k
    IDX, VA0, VA1, TMP = 106, 107, 108, 109
    a.label('RV_role')
    if c.opts.get('bare', 0): a('s_branch M_exit')
    if not c.opts.get('fuse', 1): c.rt(1)
    a('v_lshrrev_b32 v1, 4, v%d' % VL)
    a('v_bfe_u32 v3, v1, 3, 1\nv_mov_b32 v4, 0x4444\nv_mov_b32 v5, 0xeeee\nv_cmp_eq_u32 vcc, 1, v3\ns_nop 1\nv_cndmask_b32 v%d, v4, v5, vcc' % IDX)
    a('s_and_b32 s32, s25, 1\ns_lshl_b32 s32, s32, 9\ns_bfe_u32 s33, s25, 0x10001\ns_lshl_b32 s33, s33, 3\ns_add_u32 s32, s32, s33')
    a('v_and_b32 v2, 31, v1\nv_lshl_add_u32 v2, v2, 4, s32\nv_add_u32 v3, 1024, v2\nv_mov_b32 v4, 0x%x\nv_cmp_gt_u32 vcc, 32, v1' % OOB)
    a('s_nop 1\nv_cndmask_b32 v%d, v3, v2, vcc\nv_cndmask_b32 v%d, v4, v2, vcc' % (VA0, VA1))
    a('s_and_b32 s24, s22, 3')
    a('s_mul_i32 s26, s24, 7168\ns_add_u32 s26, s26, 0x%x' % MEMX)
    a('s_mul_i32 s29, s24, 0x%x\ns_lshr_b32 s32, s25, 2\ns_mul_i32 s32, s32, 28672\ns_add_u32 s29, s29, s32\ns_mul_i32 s32, s20, 7168\ns_add_u32 s29, s29, s32\ns_add_u32 s29, s29, 0x%x' % (VMSEG, VM))
    a('s_lshl_b32 s30, s24, 6\ns_lshl_b32 s32, s25, 2\ns_add_u32 s30, s30, s32\ns_add_u32 s30, s30, 0x%x' % FLG_V)
    a.label('RV_top')
    for r in range(28): a('v_mov_b32 v%d, 0' % r)
    a('s_add_u32 s27, s26, 4096\ns_add_u32 s32, s29, 4096')
    c.ws(0)
    l = c.spin_head('RVm0')
    a('buffer_load_dword v%d, off, s[4:7], s26 sc1\ns_waitcnt vmcnt(0)\nv_cmp_eq_u32 vcc, -1, v%d\ns_cbranch_vccnz %s' % (TMP, TMP, l))
    c.poll('RVm1', ['buffer_load_dwordx4 %s, v%d, s[4:7], s%d offen offset:%d sc1' % (vr(M(k), 4), VL, 26 + k // 4, (k % 4) * 1024) for k in range(7)],
           list(range(M(0), M(7))), TMP, 1)
    c.ws(1)
    def post(pr):
        x, y, o = 8 * pr, 8 * pr + 4, 56 + 2 * pr
        if pr == 3:
            y = 64
            for r in range(4): a('v_mov_b32 v%d, v%d' % (y + r, x + r))
            a('s_nop 0')
        for r in range(4): a('v_permlane32_swap_b32 v%d, v%d' % (x + r, y + r))
        for r in range(4): a('v_add_f32 v%d, v%d, v%d' % (x + r, x + r, y + r))
        cvt(a, o, x, x + 1); cvt(a, o + 1, x + 2, x + 3)
        a('v_min_u32 v%d, -2, v%d\nv_min_u32 v%d, -2, v%d' % (o, o, o + 1, o + 1))
        a('buffer_store_dwordx2 %s, v%d, s[4:7], s%d offen offset:%d sc1' % (vr(o, 2), VA1 if pr == 3 else VA0, 29 if pr < 2 else 32, (pr % 2) * 2048))
    for t in range(7):
        for k in range(7):
            smf(a, 4 * t, M(k), WREG(t * 7 + k), IDX)
            if k == 2 and t in (2, 4, 6): post(t // 2 - 1)
    a('s_nop 7')
    post(3)
    c.ws(2)
    a('s_waitcnt vmcnt(0)\ns_barrier')
    a('s_cmp_lg_u32 s20, 0\ns_cbranch_scc1 RV_nf')
    a('s_mov_b64 exec, 1\nbuffer_store_dword v%d, off, s[4:7], s30 sc1\ns_mov_b64 exec, -1' % IDX)
    a.label('RV_nf')
    c.ws(3); c.wflush(1, 25, 64)
    a('s_add_u32 s26, s26, %d\ns_add_u32 s29, s29, 0x%x\ns_add_u32 s30, s30, 256' % (4 * 7168, 4 * VMSEG))
    a('s_add_u32 s24, s24, 4\ns_cmp_lt_u32 s24, 64\ns_cbranch_scc1 RV_top')
    c.end()

def gen_RH(c):
    from mainker import WREG, cvt
    a = c.a
    a.label('RH_role')
    if c.opts.get('bare', 0): a('s_branch M_exit')
    a('s_sub_u32 s22, s22, 128\ns_lshr_b32 s25, s22, 3\ns_and_b32 s24, s22, 7')
    srd(a, 8, 40, 448 * 1792 * 2)
    idx14(a, 6, 14, 3584)
    a('s_mul_i32 s26, s25, 896\ns_mul_i32 s27, s20, 224\ns_add_u32 s26, s26, s27')
    a('s_mul_i32 s35, s20, 28672')
    a('v_lshrrev_b32 v2, 4, v1\nv_bfe_u32 v3, v1, 2, 1\nv_lshl_add_u32 v2, v2, 2, v3\nv_bfe_u32 v3, v1, 3, 1\nv_lshl_add_u32 v2, v3, 5, v2')
    a('v_mul_u32_u24 v2, 224, v2\nv_and_b32 v3, 3, v1\nv_lshl_add_u32 v2, v3, 3, v2\nv_add_u32 v5, s35, v2')
    def ld(kk):
        for i in range(14):
            a('s_add_u32 m0, s35, %d\ns_nop 0' % ((kk % 2) * 14336 + i * 1024))
            a('buffer_load_dwordx4 v%d, s[8:11], s26 offen lds' % (6 + i))
        a('s_add_u32 s26, s26, %d' % (64 * 3584))
    ld(0); ld(1)
    for kk in range(7):
        a('s_waitcnt vmcnt(%d)' % (14 if kk < 6 else 0))
        for t in range(7):
            for q in range(4):
                a('ds_read_b64_tr_b16 %s, v5 offset:%d' % (R(WREG(t * 7 + kk) + 2 * q, 2), (kk % 2) * 14336 + (16 * (q // 2) + 2 * (q % 2)) * 224 + 32 * t))
            if t % 2 == 1: a('s_waitcnt lgkmcnt(4)')
        a('s_waitcnt lgkmcnt(0)')
        if kk + 2 < 7: ld(kk + 2)
    a('s_barrier')
    if c.opts.get('fuse', 1):
        import fused as F
        F.ln_wait1(c, 'Hi', 2)
    a('s_lshl_b32 s26, s25, 2\ns_add_u32 s26, s26, 0x%x' % FLG_H)
    gemm_setup(a, 26)
    a('s_mul_i32 s29, s24, 0x%x\ns_mul_i32 s32, s25, 28672\ns_add_u32 s29, s29, s32\ns_add_u32 s29, s29, 0x%x' % (HSEG, HB))
    a('s_mul_i32 s33, s20, 3072')
    a('s_lshr_b32 s34, s20, 1\ns_lshl_b32 s34, s34, 10\ns_and_b32 s32, s20, 1\ns_lshl_b32 s32, s32, 3\ns_add_u32 s34, s34, s32\ns_add_u32 s34, s34, 12288')
    a('s_mov_b32 s35, 0x%x' % f2u(-LOG2E))
    def epi():
        for mt in range(2):
            a('s_add_u32 s32, s29, s33\ns_add_u32 s26, s29, s34')
            for t in range(7):
                s = ACC(t, mt); tm = 56 + 4 * (t % 2)
                for r in range(4): a('v_mul_f32 v%d, s35, v%d' % (tm + r, s + r))
                for r in range(4): a('v_exp_f32 v%d, v%d' % (tm + r, tm + r))
                for r in range(4): a('v_add_f32 v%d, 1.0, v%d' % (tm + r, tm + r))
                for r in range(4): a('v_rcp_f32 v%d, v%d' % (tm + r, tm + r))
                for r in range(4): a('v_mul_f32 v%d, v%d, v%d' % (s + r, s + r, tm + r))
                o = 72 + 16 * mt + 2 * t
                cvt(a, o, s, s + 1); cvt(a, o + 1, s + 2, s + 3)
                if t % 2 == 1:
                    a('buffer_store_dwordx4 %s, v%d, s[4:7], s32 offen offset:%d sc1' % (vr(o - 2, 4), VL, (t // 2) * 1024))
                elif t == 6:
                    a('buffer_store_dwordx2 %s, v%d, s[4:7], s26 offen sc1' % (vr(o, 2), VL))
            a('s_add_u32 s29, s29, 0x%x' % (14336 if mt == 0 else 8 * HSEG - 14336))
    gemm_loop(c, 'RH', 8, True, epi)

def gen_RT(c):
    from mainker import WREG, load_weights, cvt, NEGBIG, OOB
    a = c.a
    VKX, VKM, VPM, VNG, VSB, TMP = 106, 109, 112, 113, 114, 115
    TP = lambda mt, sg: 72 + 16 * mt + 4 * sg
    KX = lambda tau, sg: 16 * tau + 4 * sg
    KM = lambda sg: 32 + 4 * sg
    SA = lambda tile, mt: 48 + 8 * tile + 4 * mt
    SB = 65536
    a.label('RT_role')
    if c.opts.get('bare', 0): a('s_branch M_exit')
    a('s_sub_u32 s22, s22, 64\ns_lshr_b32 s25, s22, 2\ns_and_b32 s24, s22, 3')
    if c.opts.get('fuse', 1):
        import fused as F
        F.wait_all(c, 'Tw', 's_add_u32 s26, s25, 16')
    a('s_lshl_b32 s33, s25, 2\ns_add_u32 s33, s33, 0x%x' % FLG_P)
    a('s_mul_i32 s26, s25, 0x%x\ns_mul_i32 s29, s20, %d\ns_add_u32 s26, s26, s29\ns_add_u32 s26, s26, 0x%x' % (MAT, 49 * 2048, AFR))
    if c.opts.get('fuse', 1):
        F.ln_addr(a, 4, 1)
        load_weights(a, [(WREG(b), b * 2048) for b in range(45)], 26, VL, lambda: F.ln_load(a, 4))
        F.ln_check(c, 'Tl', 4, 1)
        gemm_setup(a, 33)
        load_weights(a, [(WREG(b), b * 2048) for b in range(45, 49)], 26, VL)
    else:
        gemm_setup(a, 33)
        load_weights(a, [(WREG(b), b * 2048) for b in range(49)], 26, VL)
    a('v_and_b32 v2, 15, v1\nv_lshrrev_b32 v3, 4, v1\nv_and_b32 v4, 7, v1')
    a('v_lshrrev_b32 v5, 1, v3\nv_and_b32 v6, 1, v3\nv_lshlrev_b32 v6, 9, v6\nv_lshl_add_u32 v6, v5, 10, v6\nv_lshl_add_u32 v%d, v2, 4, v6' % VKX)
    a('s_lshr_b32 s33, s20, 1')
    a('v_lshlrev_b32 v5, 4, v4\nv_and_b32 v6, 1, v3\nv_lshl_add_u32 v6, v6, 9, v5\nv_lshrrev_b32 v7, 1, v3\nv_lshl_add_u32 v6, v7, 7, v6')
    a('s_lshl_b32 s32, s20, 10\nv_add_u32 v%d, s32, v6' % VKM)
    a('v_lshl_add_u32 v5, v3, 8, v5')
    a('s_and_b32 s34, s20, 1\ns_lshl_b32 s32, s33, 10\ns_lshl_b32 s35, s34, 7\ns_add_u32 s32, s32, s35\ns_add_u32 s32, s32, 4096\nv_add_u32 v%d, s32, v5' % (VKM + 1))
    a('s_lshl_b32 s32, s33, 7\ns_add_u32 s32, s32, 6144\nv_add_u32 v%d, s32, v5' % (VKM + 2))
    a('s_sub_u32 s50, s34, 1\ns_not_b32 s51, s50')
    a('s_lshl_b32 s32, s20, 4\nv_lshlrev_b32 v5, 2, v3\nv_sub_u32 v5, v2, v5\nv_add_u32 v%d, s32, v5' % VNG)
    a('s_lshr_b32 s32, s25, 2\ns_lshl_b32 s32, s32, 1\ns_add_u32 s32, s32, s20\ns_lshl_b32 s32, s32, 10\ns_add_u32 s32, s32, 32768')
    a('s_and_b32 s33, s25, 1\ns_lshl_b32 s33, s33, 9\ns_add_u32 s32, s32, s33\ns_bfe_u32 s33, s25, 0x10001\ns_lshl_b32 s33, s33, 3\ns_add_u32 s32, s32, s33')
    a('v_add_u32 v5, s32, v%d\nv_mov_b32 v6, 0x%x\nv_cmp_gt_u32 s[52:53], 32, v1\ns_nop 1\nv_cndmask_b32 v%d, v6, v5, s[52:53]' % (VL, OOB, VPM))
    a('s_mul_i32 s32, s20, 6144\ns_add_u32 s32, s32, %d\nv_add_u32 v%d, s32, v%d' % (SB, VSB, VL))
    a('s_lshl_b32 s32, s20, 10\ns_add_u32 s32, s32, %d\nv_add_u32 v116, s32, v%d' % (SB, VL))
    VSR = 116
    a('s_lshl_b32 s29, s24, 15\ns_lshl_b32 s32, s20, 13\ns_add_u32 s29, s29, s32\ns_add_u32 s29, s29, 0x%x' % XK)
    a('s_mul_i32 s33, s24, 7168\ns_add_u32 s33, s33, 0x%x' % MEMX)
    a('s_mul_i32 s34, s24, 40960\ns_add_u32 s34, s34, 0x%x' % PX)
    a('s_lshl_b32 s54, s25, 1\ns_add_u32 s54, s54, s20\ns_lshl_b32 s54, s54, 10')
    a('s_mov_b32 s55, 0x%x' % NEGBIG)
    def epi():
        for mt in range(2):
            for sg in range(3):
                for q in range(4):
                    s = ACC(2 * sg + q % 2, mt) + 2 * (q // 2)
                    cvt(a, TP(mt, sg) + q, s, s + 1)
            for hf in range(2):
                s = ACC(6, mt) + 2 * hf; o = TP(mt, 3) + 2 * hf
                cvt(a, o, s, s + 1)
                a('v_and_b32 v%d, s51, v%d\nv_and_b32 v%d, s50, v%d' % (o + 1, o, o, o))
        a('s_add_u32 s32, s29, 4096')
        for tau in range(2):
            for sg in range(4):
                a('buffer_load_dwordx4 %s, v%d, s[4:7], s%d offen offset:%d' % (vr(KX(tau, sg), 4), VKX, 32 if sg >= 2 else 29, tau * 2048 + (sg % 2) * 256))
        for tau in range(2):
            for sg in range(4):
                a('s_waitcnt vmcnt(%d)' % (7 - 4 * tau - sg))
                for mt in range(2):
                    if tau <= mt:
                        mfma(a, SA(tau, mt), KX(tau, sg), TP(mt, sg), None if sg == 0 else SA(tau, mt))
        a('s_nop 4')
        for (tau, mt) in ((0, 0), (0, 1), (1, 1)):
            if tau == 1: a('s_nop 2')
            a('ds_write_b128 v%d, %s offset:%d' % (VSB, vr(SA(tau, mt), 4), (tau * 2 + mt) * 1024))
        a('s_waitcnt lgkmcnt(0)\ns_barrier')
        a('s_cmp_ge_u32 s20, 2\ns_cbranch_scc1 RT_p1')
        for tau in range(2):
            for p in range(4):
                a('ds_read_b128 %s, v%d offset:%d' % (vr(16 * tau + 4 * p, 4), VSR, p * 6144 + tau * 2048))
        for tau in range(2):
            a('s_waitcnt lgkmcnt(%d)' % (4 - 4 * tau))
            for r in range(4):
                b = 16 * tau + r
                a('v_add_f32 v%d, v%d, v%d\nv_add_f32 v%d, v%d, v%d\nv_add_f32 v%d, v%d, v%d' % (b, b, b + 4, b + 8, b + 8, b + 12, b, b, b + 8))
                a('v_cmp_le_i32 vcc, %d, v%d\nv_mov_b32 v%d, s55\ns_nop 0\nv_cndmask_b32 v%d, v%d, v%d, vcc' % (16 * tau + r, VNG, b + 4, 8 * tau + r, b + 4, b))
        a('v_max3_f32 v4, v0, v1, v2\nv_max3_f32 v4, v4, v3, v8\nv_max3_f32 v4, v4, v9, v10\nv_max_f32 v4, v4, v11')
        a.label('RT_p1')
        c.ws(1)
        l = c.spin_head('RTm0')
        a('buffer_load_dword v%d, off, s[4:7], s33 sc1\ns_waitcnt vmcnt(0)\nv_cmp_eq_u32 vcc, -1, v%d\ns_cbranch_vccnz %s' % (TMP, TMP, l))
        l = c.spin_head('RTm1')
        for sg in range(4):
            a('buffer_load_dwordx4 %s, v%d, s[4:7], s33 offen offset:%d sc1' % (vr(KM(sg), 4), VKM + max(0, sg - 1), 256 if sg == 1 else 0))
        a('s_waitcnt vmcnt(0)')
        c.check_poison(list(range(KM(0), KM(0) + 16)), TMP)
        a('s_cbranch_vccnz %s' % l)
        c.ws(2)
        for sg in range(4):
            for mt in range(2):
                mfma(a, SA(2, mt), KM(sg), TP(mt, sg), None if sg == 0 else SA(2, mt))
        a('s_nop 4')
        a('ds_write_b128 v%d, %s offset:4096\ns_nop 2\nds_write_b128 v%d, %s offset:5120' % (VSB, vr(SA(2, 0), 4), VSB, vr(SA(2, 1), 4)))
        a('s_waitcnt lgkmcnt(0)\ns_barrier')
        a('s_cmp_ge_u32 s20, 2\ns_cbranch_scc1 RT_p2')
        for p in range(4):
            a('ds_read_b128 %s, v%d offset:%d' % (vr(16 + 4 * p, 4), VSR, p * 6144 + 4096))
        a('v_mov_b32 v5, 0xff800000\ns_waitcnt lgkmcnt(0)')
        for r in range(4):
            b = 16 + r
            a('v_add_f32 v%d, v%d, v%d\nv_add_f32 v%d, v%d, v%d\nv_add_f32 v%d, v%d, v%d' % (b, b, b + 4, b + 8, b + 8, b + 12, b, b, b + 8))
            a('v_cndmask_b32 v%d, v5, v%d, s[52:53]' % (12 + r, b))
        a('v_max3_f32 v4, v4, v12, v13\nv_max3_f32 v4, v4, v14, v15')
        def allg(op, r, tmp):
            for sw in ('16', '32'):
                a('v_mov_b32 v%d, v%d\ns_nop 1\nv_permlane%s_swap_b32 v%d, v%d\n%s v%d, v%d, v%d' % (tmp, r, sw, tmp, r, op, r, r, tmp))
        allg('v_max_f32', 4, 5)
        regs = [0, 1, 2, 3, 8, 9, 10, 11, 12, 13, 14, 15]
        for r in regs: a('v_sub_f32 v%d, v%d, v4' % (r, r))
        for r in regs: a('v_exp_f32 v%d, v%d' % (r, r))
        a('v_add_f32 v4, v0, v1\nv_add_f32 v5, v2, v3\nv_add_f32 v6, v8, v9\nv_add_f32 v7, v10, v11\nv_add_f32 v16, v12, v13\nv_add_f32 v17, v14, v15')
        a('v_add_f32 v4, v4, v5\nv_add_f32 v6, v6, v7\nv_add_f32 v16, v16, v17\nv_add_f32 v4, v4, v6\nv_add_f32 v4, v4, v16')
        allg('v_add_f32', 4, 5)
        a('v_rcp_f32 v4, v4\ns_add_u32 s32, s34, s54')
        for r in regs: a('v_mul_f32 v%d, v%d, v4' % (r, r))
        for i in range(6): cvt(a, 16 + i, regs[2 * i], regs[2 * i + 1])
        for i in range(6): a('v_min_u32 v%d, -2, v%d' % (16 + i, 16 + i))
        a('buffer_store_dwordx4 v[16:19], v%d, s[4:7], s32 offen sc1' % VL)
        a('buffer_store_dwordx2 v[20:21], v%d, s[4:7], s34 offen sc1' % VPM)
        c.ws(3); c.wflush(2, 25, 24)
        a.label('RT_p2')
        a('s_add_u32 s29, s29, %d\ns_add_u32 s33, s33, %d\ns_add_u32 s34, s34, %d' % (4 * 32768, 4 * 7168, 4 * PXSEG))
    gemm_loop(c, 'RT', 4, True, epi)

def gen_W3(c):
    from mainker import cvt
    a = c.a
    D = lambda ct, mt: 4 * (2 * ct + mt)
    HF = lambda ks, mt: 32 + 4 * (2 * ks + mt)
    UF = lambda hh, ct: 144 + 4 * (4 * hh + ct)
    PF = lambda hh, mt: 208 + 4 * (2 * hh + mt)
    VMF = lambda ct: 32 + 4 * ct
    PMF = lambda mt: 48 + 4 * mt
    XR, L16, VO, VRW, VRR, TMP = 240, 244, 245, 246, 247, 248
    W2 = lambda ks, ct: 256 + 4 * (4 * ks + ct)
    a.label('W3_role')
    a('s_sub_u32 s22, s22, 160\ns_cmp_ge_u32 s22, %d\ns_cbranch_scc1 M_exit' % (0 if c.opts.get('novm', 0) or c.opts.get('now3', 0) or c.opts.get('bare', 0) else 63))
    a('s_mul_i32 s24, s22, 37\ns_lshr_b32 s24, s24, 8\ns_mul_i32 s25, s24, 7\ns_sub_u32 s25, s22, s25')
    srd(a, 8, 42, 448 * 1792 * 2)
    srd(a, 12, 44, XSZ)
    srd(a, 52, 36, XSZ)
    a('v_lshlrev_b32 v%d, 4, v1' % L16)
    a('v_lshrrev_b32 v2, 3, v1\nv_mul_u32_u24 v2, 0x380, v2\nv_and_b32 v3, 7, v1\nv_lshl_add_u32 v6, v3, 4, v2')
    a('s_mul_i32 s26, s20, %d\ns_lshl_b32 s27, s25, 7\ns_add_u32 s26, s26, s27' % (448 * 896))
    a('s_mul_i32 s35, s20, 28672')
    a('v_lshrrev_b32 v2, 2, v1\nv_lshlrev_b32 v2, 7, v2\nv_and_b32 v3, 3, v1\nv_lshl_add_u32 v2, v3, 3, v2\nv_add_u32 v5, s35, v2')
    def ld(ch):
        for i in range(14):
            a('s_add_u32 m0, s35, %d\ns_nop 0' % ((ch % 2) * 14336 + i * 1024))
            a('buffer_load_dwordx4 v6, s[8:11], s26 offen lds')
            a('s_add_u32 s26, s26, %d' % (8 * 896))
    ld(0); ld(1)
    for ch in range(4):
        a('s_waitcnt vmcnt(%d)' % (14 if ch < 3 else 0))
        for tt in range(7):
            for ct in range(4):
                dst = W2(3 * ch + tt // 2, ct) + 2 * (tt % 2) if tt < 6 else W2(12 + ch // 2, ct) + 2 * (ch % 2)
                a('ds_read_b64_tr_b16 %s, v5 offset:%d' % (R(dst, 2), (ch % 2) * 14336 + 16 * tt * 128 + 32 * ct))
            if tt % 2 == 1: a('s_waitcnt lgkmcnt(4)')
        a('s_waitcnt lgkmcnt(0)')
        if ch + 2 < 4: ld(ch + 2)
    a('s_barrier')
    a('v_and_b32 v2, 15, v1\nv_lshrrev_b32 v3, 4, v1\nv_mul_u32_u24 v2, 0x380, v2\nv_lshl_add_u32 v2, v3, 3, v2')
    a('s_lshl_b32 s26, s25, 7\ns_lshl_b32 s27, s20, 5\ns_add_u32 s26, s26, s27\nv_add_u32 v%d, s26, v2' % VO)
    a('s_lshl_b32 s26, s20, 13\nv_add_u32 v%d, s26, v%d\ns_lshl_b32 s26, s20, 11\nv_add_u32 v%d, s26, v%d' % (VRW, L16, VRR, L16))
    if c.opts.get('fuse', 1):
        import fused as F
        F.wait_word(c, 'Wi', F.I1, 32, 2)
    c.rt(2)
    a.label('W3_top')
    a('s_lshl_b32 s32, s24, 6\ns_lshl_b32 s33, s20, 2\ns_add_u32 s26, s32, s33\ns_add_u32 s26, s26, 0x%x' % FLG_H)
    a('s_lshl_b32 s33, s20, 4\ns_add_u32 s27, s32, s33\ns_add_u32 s28, s27, 0x%x\ns_add_u32 s27, s27, 0x%x' % (FLG_P, FLG_U))
    a('s_add_u32 s29, s27, %d' % (FLG_V - FLG_U))
    a('s_mul_i32 s30, s24, 0x%x\ns_mul_i32 s33, s20, 28672\ns_add_u32 s30, s30, s33\ns_add_u32 s30, s30, 0x%x' % (HSEG, HB))
    a('s_mul_i32 s31, s24, 0x%x\ns_mul_i32 s33, s20, %d\ns_add_u32 s31, s31, s33\ns_lshl_b32 s33, s25, 12\ns_add_u32 s31, s31, s33\ns_add_u32 s31, s31, 0x%x' % (USEG, 4 * 28672, UB))
    a('s_mul_i32 s34, s24, 28672\ns_add_u32 s35, s34, 14336')
    c.ws(0)
    c.wait_flags('W3h', 26, 1, TMP)
    c.wait_flags('W3u', 27, 4, TMP)
    for ks in range(14):
        for mt in range(2):
            a('s_add_u32 s63, s30, %d' % ((mt * 14 + ks) * 1024))
            a('buffer_load_dwordx4 %s, v%d, s[4:7], s63 offen sc1' % (vr(HF(ks, mt), 4), L16))
    for hh in range(4):
        for ct in range(4):
            a('buffer_load_dwordx4 %s, v%d, s[4:7], s31 offen offset:%d sc1' % (vr(UF(hh, ct), 4), L16, ct * 1024))
        a('s_add_u32 s31, s31, 28672')
    for mt in range(2):
        a('buffer_load_dwordx2 %s, v%d, s[52:55], s%d offen' % (vr(XR + 2 * mt, 2), VO, 34 + mt))
    for ks in range(14):
        a('s_waitcnt vmcnt(%d)' % (44 - 2 * ks))
        for ct in range(4):
            for mt in range(2):
                mfma(a, D(ct, mt), W2(ks, ct), HF(ks, mt), None if ks == 0 else D(ct, mt))
    a('s_mul_i32 s30, s24, %d\ns_lshl_b32 s33, s20, 13\ns_add_u32 s31, s30, s33\ns_add_u32 s31, s31, 0x%x' % (PXSEG, PX))
    a('s_lshl_b32 s33, s20, 11\ns_add_u32 s30, s30, s33\ns_add_u32 s30, s30, 0x%x' % (PX + 32768))
    a('s_mul_i32 s32, s24, 0x%x\ns_mul_i32 s33, s20, 28672\ns_add_u32 s32, s32, s33\ns_lshl_b32 s33, s25, 12\ns_add_u32 s32, s32, s33\ns_add_u32 s32, s32, 0x%x' % (VMSEG, VM))
    a('s_add_u32 s63, s31, 4096')
    c.ws(1)
    pl = c.opts.get('pl', 1) and c.opts.get('fuse', 1)
    if pl: a('s_cmp_eq_u32 s24, 63\ns_cbranch_scc1 W3_last')
    l = c.spin_head('W3pv')
    a('buffer_load_dwordx4 %s, off, s[4:7], s28 sc1\nbuffer_load_dwordx4 %s, off, s[4:7], s29 sc1\ns_waitcnt vmcnt(0)' % (vr(TMP, 4), vr(TMP + 4, 4)))
    for i in range(3): a('v_min3_u32 v%d, v%d, v%d, v%d' % (TMP, TMP, TMP + 1 + 2 * i, TMP + 2 + 2 * i))
    a('v_min_u32 v%d, v%d, v%d' % (TMP, TMP, TMP + 7))
    a('v_cmp_eq_u32 vcc, 0, v%d\ns_cbranch_vccnz %s' % (TMP, l))
    c.ws(2)
    def ldpv():
        for hh in range(4):
            for mt in range(2):
                a('buffer_load_dwordx4 %s, v%d, s[4:7], s%d offen offset:%d sc1' % (vr(PF(hh, mt), 4), L16, 31 if hh < 2 else 63, ((hh % 2) * 2 + mt) * 1024))
        for mt in range(2):
            a('buffer_load_dwordx4 %s, v%d, s[4:7], s30 offen offset:%d sc1' % (vr(PMF(mt), 4), L16, mt * 1024))
        for ct in range(4):
            a('buffer_load_dwordx4 %s, v%d, s[4:7], s%d offen offset:%d sc1' % (vr(VMF(ct), 4), L16, 32, ct * 1024))
    ldpv()
    a.label('W3_go')
    for hh in range(4):
        a('s_waitcnt vmcnt(%d)' % (12 - 2 * hh))
        for ct in range(4):
            for mt in range(2):
                mfma(a, D(ct, mt), UF(hh, ct), PF(hh, mt), D(ct, mt))
    for ct in range(4):
        a('s_waitcnt vmcnt(%d)' % (3 - ct))
        for mt in range(2):
            mfma(a, D(ct, mt), VMF(ct), PMF(mt), D(ct, mt))
    a('s_barrier')
    for ct in range(4):
        for mt in range(2):
            if ct == 3: a('s_nop 1')
            a('ds_write_b128 v%d, %s offset:%d' % (VRW, vr(D(ct, mt), 4), (2 * ct + mt) * 1024))
    a('s_waitcnt lgkmcnt(0)\ns_barrier')
    for mt in range(2):
        for p in range(4):
            a('ds_read_b128 %s, v%d offset:%d' % (vr(16 * mt + 4 * p, 4), VRR, p * 8192 + mt * 1024))
    for mt in range(2):
        b = 16 * mt
        for q in range(2):
            a('v_lshlrev_b32 v%d, 16, v%d\nv_and_b32 v%d, 0xffff0000, v%d' % (32 + 2 * q, XR + 2 * mt + q, 33 + 2 * q, XR + 2 * mt + q))
        a('s_waitcnt lgkmcnt(%d)' % (4 - 4 * mt))
        for r in range(4):
            a('v_add_f32 v%d, v%d, v%d\nv_add_f32 v%d, v%d, v%d\nv_add_f32 v%d, v%d, v%d\nv_add_f32 v%d, v%d, v%d' % (
                b + r, b + r, b + 4 + r, b + 8 + r, b + 8 + r, b + 12 + r, b + r, b + r, 32 + r, b + r, b + r, b + 8 + r))
        cvt(a, 36 + 2 * mt, b, b + 1); cvt(a, 37 + 2 * mt, b + 2, b + 3)
        a('buffer_store_dwordx2 %s, v%d, s[12:15], s%d offen' % (vr(36 + 2 * mt, 2), VO, 34 + mt))
    c.ws(3); c.wflush(0, 25, 40)
    a('s_add_u32 s24, s24, 9\ns_cmp_lt_u32 s24, 64\ns_cbranch_scc1 W3_top')
    c.end()
    if pl:
        a.label('W3_last')
        a('s_mov_b32 s28, 0x%x' % (MEMX + 63 * 7168))
        l = c.spin_head('W3m')
        a('buffer_load_dword v%d, off, s[4:7], s28 sc1\ns_waitcnt vmcnt(0)\nv_cmp_eq_u32 vcc, -1, v%d\ns_cbranch_vccnz %s' % (TMP, TMP, l))
        l = c.spin_head('W3l')
        ldpv()
        a('s_waitcnt vmcnt(0)')
        c.check_poison(list(range(PF(0, 0), PF(0, 0) + 32)) + list(range(VMF(0), VMF(0) + 24)), TMP)
        a('s_cbranch_vccnz %s' % l)
        c.ws(2)
        a('s_branch W3_go')

def gen_workers(c):
    a = c.a
    a.label('W_roles')
    a('s_sub_u32 s25, s21, 1\ns_lshl_b32 s25, s25, 5\ns_add_u32 s22, s22, s25')
    a('v_lshlrev_b32 v%d, 4, v1' % VL)
    a('s_cmp_ge_u32 s22, 160\ns_cbranch_scc1 W3_role')
    a('s_cmp_ge_u32 s22, 128\ns_cbranch_scc1 RH_role')
    a('s_cmp_ge_u32 s22, 64\ns_cbranch_scc1 RT_role')
    gen_RU(c)
    gen_RT(c)
    gen_RH(c)
    gen_W3(c)
```

```python
from asm import *
from layout import *
from prep import srd, f2u, WSZ
import os
WS = int(os.environ.get('WS', 128))
FS = max(256, 4 * WS)
LNF = FWR + 32 * FS
FW = FWR
I0, I1 = 128, 192
KX, KM, KQ, KK, KV, KO = 72, 74, 76, 78, 80, 82

def js(c, k):
    if c.opts.get('jst', 99) == k: c.rt(1, False)

def job_ids(a, src):
    a('s_mul_i32 s57, s%d, 9363\ns_lshr_b32 s57, s57, 16\ns_mul_i32 s24, s57, 7\ns_sub_u32 s24, s%d, s24\ns_and_b32 s25, s57, 15' % (src, src))

def wait_word(c, name, off, val, tmp):
    a = c.a
    l = c.spin_head(name)
    a('buffer_load_dword v%d, off, s[16:19], 0 offset:%d sc1\ns_waitcnt vmcnt(0)\nv_cmp_gt_u32 vcc, %d, v%d\ns_cbranch_vccnz %s' % (tmp, off, val, tmp, l))

def check_word(c, name, off, val, tmp):
    a = c.a
    ok = a.newlabel(name + 'ok')
    a('v_cmp_gt_u32 vcc, %d, v%d\ns_cbranch_vccz %s' % (val, tmp, ok))
    wait_word(c, name, off, val, tmp)
    a.label(ok)

def gen_jobs(c):
    a = c.a
    a.label('J_role')
    js(c, 0)
    a('s_sub_u32 s26, s65, 1\ns_lshl_b32 s26, s26, 5\ns_add_u32 s26, s26, s66')
    job_ids(a, 26)
    if c.opts.get('hp', 1):
        a('s_mov_b32 s28, 0xa9843210\ns_mov_b32 s29, 0xfed765cb\ns_lshl_b32 s27, s25, 2\ns_lshr_b64 s[28:29], s[28:29], s27\ns_and_b32 s25, s28, 15\ns_and_b32 s57, s57, 16\ns_or_b32 s57, s57, s25')
    a('v_and_b32 v10, 15, v1\nv_lshrrev_b32 v11, 4, v1')
    a('v_and_b32 v13, 7, v1\nv_xor_b32 v13, v13, v11\nv_lshlrev_b32 v4, 4, v13\nv_xor_b32 v5, 64, v4')
    a('v_lshrrev_b32 v13, 3, v1\nv_lshl_add_u32 v2, v13, 13, v4\nv_add_u32 v13, 8, v13\nv_lshl_add_u32 v3, v13, 13, v5')
    a('s_cmp_lt_u32 s65, 5\ns_cbranch_scc1 J_nx\ns_sub_u32 s64, s26, 96')
    ln_x(a)
    a.label('J_nx')
    a('s_lshl_b32 s26, s25, 9')
    a('s_lshl_b32 s27, s24, 19\ns_add_u32 s28, s27, s26\ns_lshl_b32 s27, s20, 17\ns_add_u32 s28, s28, s27')
    a('s_lshl_b32 s29, s20, 11')
    a('s_cmp_lt_u32 s57, 16\ns_cselect_b32 s8, s%d, s%d\ns_cselect_b32 s9, s%d, s%d\ns_cselect_b32 s12, s%d, s%d\ns_cselect_b32 s13, s%d, s%d' % (KV, KQ, KV + 1, KQ + 1, KO, KK, KO + 1, KK + 1))
    a('s_mov_b32 s10, 0x%x\ns_mov_b32 s11, 0x20000\ns_mov_b32 s14, 0x%x\ns_mov_b32 s15, 0x20000' % (WSZ, WSZ))
    for q in range(4):
        for hf in range(2):
            a('s_add_u32 m0, s29, %d\ns_add_u32 s27, s28, %d' % (q * 8192 + hf * 1024, q * 128))
            a('buffer_load_dwordx4 v%d, s[8:11], s27 offen lds' % (2 + hf))
    a('v_lshrrev_b32 v13, 1, v10\nv_xor_b32 v13, v13, v11\nv_lshlrev_b32 v13, 4, v13\nv_lshl_add_u32 v228, v10, 7, v13\nv_xor_b32 v229, 64, v228')
    a('v_lshlrev_b32 v12, 4, v1')
    a('s_mul_i32 s30, s20, %d\ns_add_u32 s30, s30, s24\ns_lshl_b32 s30, s30, 2\ns_mul_i32 s31, s57, %d\ns_add_u32 s30, s30, s31\ns_add_u32 s30, s30, 0x%x' % (WS // 4, FS, FW))
    a('s_mul_i32 s32, s25, 0x%x\ns_lshl_b32 s33, s24, 11\ns_add_u32 s32, s32, s33' % MAT)
    a('s_cmp_lt_u32 s57, 16\ns_cbranch_scc1 J_b')
    ACC = lambda mu: 16 + 4 * mu
    BF = lambda t, ks: 32 + 32 * (t % 4) + 4 * ks
    OUT = lambda t: 160 + 8 * t
    TI, TF = 216, 217
    ops = []
    def iss(n, k): ops.extend([n] * k)
    def wait(n):
        k = len(ops) - 1 - max(i for i, x in enumerate(ops) if x == n)
        a('s_waitcnt vmcnt(%d)' % k)
    def flag(v):
        a('v_mov_b32 v%d, %d\ns_mov_b64 exec, 1\nbuffer_store_dword v%d, off, s[4:7], s30 sc1\ns_mov_b64 exec, -1' % (TF + v % 2, v, TF + v % 2)); iss('f', 1)
        js(c, 9 + v)
    def body(load, read, nxt, scale, bar, touch):
        del ops[:]
        iss('F', 8)
        for t in range(3):
            for i in range(8): load(t, i)
            iss('L%d' % t, 8)
        if c.opts.get('touch', 1): touch(); iss('T', 1)
        def rdF(ks):
            for mu in range(4):
                a('ds_read_b128 %s, v%d offset:%d' % (ar(4 * (ks * 4 + mu), 4), 228 + ks % 2, (ks // 2) * 8192 + mu * 2048))
        def arrive(t):
            wait('L%d' % t)
            fe = c.opts.get('fe', 2)
            if t == 4 - fe: c.gate(lambda: (wait('I'), check_word(c, 'Ji', I0, 1, TI)))
            elif bar or t == 0: a('s_barrier')
            js(c, 2 + t)
            read(t)
            fe = c.opts.get('fe', 2)
            if t >= 4 - fe:
                wait('S%d' % (t - 4 + fe))
                flag(t - 3 + fe)
        arrive(0)
        for t in range(7):
            a('s_waitcnt lgkmcnt(0)')
            if t == 0: rdF(0); rdF(1); rdF(2)
            for ks in range(8):
                if t == 0:
                    a('s_waitcnt lgkmcnt(%d)' % (4 * min(2, 7 - ks)))
                    if ks + 3 < 8: rdF(ks + 3)
                for mu in range(4):
                    a('v_mfma_f32_16x16x32_bf16 %s, %s, %s, %s' % (vr(ACC(mu), 4), ar(4 * (ks * 4 + mu), 4), vr(BF(t, ks), 4), '0' if ks == 0 else vr(ACC(mu), 4)))
                    if mu == 0 and t + 3 < 7: load(t + 3, ks); iss('L%d' % (t + 3), 1)
            if t == 0: a('s_lshl_b32 s27, s20, 12\nv_mov_b32 v219, s27\nbuffer_load_dword v%d, v219, s[16:19], 0 offen offset:%d sc1' % (TI, I0)); iss('I', 1)
            if t < 6: arrive(t + 1)
            else: a('s_nop 6')
            if scale:
                for mu in range(4):
                    for r in range(4): a('v_mul_f32 v%d, s34, v%d' % (ACC(mu) + r, ACC(mu) + r))
            o = OUT(t)
            for aa in range(2):
                for q in range(4):
                    mu = aa + 2 * (q & 1); r0 = 2 * (q >> 1)
                    a('v_cvt_pk_bf16_f32 v%d, v%d, v%d' % (o + 4 * aa + q, ACC(mu) + r0, ACC(mu) + r0 + 1))
            a('buffer_store_dwordx4 %s, v12, s[4:7], s32 offen sc1' % vr(o, 4))
            a('buffer_store_dwordx4 %s, v12, s[4:7], s32 offen offset:1024 sc1' % vr(o + 4, 4)); iss('S%d' % t, 2)
            nxt(t)
        a('s_branch J_tail')
    a('s_mov_b32 s34, 0x%x' % f2u(1.4426950408889634 / 16.0))
    a('s_mul_i32 s33, s20, %d\ns_add_u32 s32, s32, s33' % (49 * 2048))
    a('v_bfe_u32 v13, v1, 3, 1\nv_bfe_u32 v14, v1, 4, 1\nv_lshl_add_u32 v13, v14, 2, v13')
    a('v_lshrrev_b32 v14, 5, v1\nv_lshl_add_u32 v15, v14, 4, v13\nv_lshl_add_u32 v14, v14, 3, v13')
    for hf in range(2):
        a('v_add_u32 v13, %d, v15\nv_lshl_add_u32 v%d, v13, 13, v%d' % (32 * hf, 6 + hf, 4 + hf))
        a('v_add_u32 v13, %d, v14\nv_lshl_add_u32 v%d, v13, 13, v%d' % (16 * hf, 8 + hf, 4 + hf))
    a('s_lshl_b32 s35, s20, 6')
    for t in range(4):
        a('s_add_u32 s27, s35, %d\ns_lshl_b32 s27, s27, 13\ns_add_u32 s%d, s27, s26' % (8 * (t // 2) + 2 * (t % 2), 50 + t))
    a('s_lshl_b32 s35, s20, 5')
    for t in (4, 5):
        a('s_add_u32 s27, s35, %d\ns_lshl_b32 s27, s27, 13\ns_add_u32 s%d, s27, s26' % (256 + 2 * (t % 2), 50 + t))
    a('s_lshr_b32 s35, s20, 1\ns_lshl_b32 s35, s35, 5\ns_and_b32 s27, s20, 1\ns_lshl_b32 s27, s27, 1\ns_add_u32 s27, s27, s35\ns_add_u32 s27, s27, 384')
    a('s_lshl_b32 s27, s27, 13\ns_add_u32 s56, s27, s26')
    a('s_lshl_b32 s35, s20, 15\ns_add_u32 s35, s35, 32768\nv_add_u32 v220, s35, v228\nv_add_u32 v221, s35, v229')
    def loadA(t, i):
        for q in [i // 2]:
            for hf in [i % 2]:
                a('s_add_u32 m0, s35, %d\ns_add_u32 s27, s%d, %d' % ((t % 4) * 8192 + q * 2048 + hf * 1024, 50 + t, 128 * q))
                a('buffer_load_dwordx4 v%d, s[12:15], s27 offen lds' % ((6 if t < 4 else 8) + hf))
    def readA(t):
        for ks in range(8):
            a('ds_read_b128 %s, v%d offset:%d' % (vr(BF(t, ks), 4), 220 + ks % 2, (t % 4) * 8192 + (ks // 2) * 2048))
    def touchA():
        a('v_lshrrev_b32 v14, 2, v1\nv_and_b32 v15, 3, v1\nv_lshlrev_b32 v14, 13, v14\nv_lshl_add_u32 v14, v15, 7, v14')
        a('buffer_load_dword v246, v14, s[12:15], s28 offen')
    body(loadA, readA, lambda t: a('s_add_u32 s32, s32, %d' % (7 * 2048)), True, False, touchA)
    a.label('J_b')
    a('s_lshr_b32 s33, s25, 2\ns_lshl_b32 s33, s33, 1')
    for t in range(7):
        a('s_add_u32 s27, s33, %d\ns_cmp_ge_u32 s27, 7\ns_cselect_b32 s31, 7, 0\ns_sub_u32 s%d, s27, s31' % (t, 50 + t))
    a('s_mul_i32 s27, s20, 14336\ns_add_u32 s34, s32, s27\ns_add_u32 s34, s34, 0x%x' % BFR)
    a('s_mul_i32 s27, s50, 57344\ns_add_u32 s32, s34, s27')
    a('s_mul_i32 s26, s25, 229376\ns_mul_i32 s27, s20, 57344\ns_add_u32 s26, s26, s27')
    a('v_lshrrev_b32 v13, 3, v1\nv_mul_u32_u24 v13, 0x380, v13\nv_lshlrev_b32 v14, 1, v11\nv_and_b32 v15, 7, v1\nv_xor_b32 v14, v14, v15')
    a('v_lshl_add_u32 v6, v14, 4, v13\nv_xor_b32 v14, 4, v14\nv_lshl_add_u32 v7, v14, 4, v13')
    a('s_lshl_b32 s35, s20, 13\ns_add_u32 s35, s35, 32768')
    a('v_bfe_u32 v13, v1, 2, 2\nv_lshrrev_b32 v14, 1, v13\nv_lshl_add_u32 v14, v11, 1, v14\nv_and_b32 v14, 3, v14\nv_xor_b32 v14, s20, v14')
    a('v_lshl_add_u32 v13, v11, 3, v13\nv_lshlrev_b32 v13, 7, v13\nv_lshl_add_u32 v13, v14, 5, v13\nv_and_b32 v14, 3, v1\nv_lshl_add_u32 v13, v14, 3, v13')
    a('v_add_u32 v220, 32768, v13\nv_xor_b32 v221, 64, v220\nv_add_u32 v221, 512, v221\nv_add_u32 v222, 0x10000, v220\nv_add_u32 v223, 0x10000, v221')
    def loadB(t, i):
        if i == 0: a('s_lshl_b32 s31, s%d, 7\ns_add_u32 s31, s31, s26' % (50 + t))
        for i in [i]:
            a('s_add_u32 m0, s35, %d\ns_add_u32 s27, s31, %d' % ((t % 4) * 32768 + i * 1024, i * 7168))
            a('buffer_load_dwordx4 v%d, s[12:15], s27 offen lds' % (6 + i % 2))
    def readB(t):
        for ks in range(8):
            for hf in range(2):
                a('ds_read_b64_tr_b16 %s, v%d offset:%d' % (vr(BF(t, ks) + 2 * hf, 2), 220 + 2 * ((t % 4) // 2) + hf, (t % 2) * 32768 + ks * 4096))
            if ks == 6: a('s_waitcnt lgkmcnt(12)')
    def nxtB(t):
        if t < 6: a('s_mul_i32 s27, s%d, 57344\ns_add_u32 s32, s34, s27' % (51 + t))
    def touchB():
        a('s_lshl_b32 s27, s24, 2\ns_add_u32 s27, s27, s20\ns_lshl_b32 s27, s27, 13\ns_mul_i32 s31, s25, 229376\ns_add_u32 s27, s27, s31\nv_lshlrev_b32 v14, 7, v1')
        a('buffer_load_dword v246, v14, s[12:15], s27 offen')
    body(loadB, readB, nxtB, False, True, touchB)

    a.label('J_tail')
    wait('S4'); flag(5)
    a('s_cmp_lt_u32 s65, 5\ns_cbranch_scc1 J_t1')
    ln_stats(a)
    a.label('J_t1')
    wait('S5'); flag(6)
    a('s_cmp_lt_u32 s65, 5\ns_cbranch_scc1 J_t2')
    n0 = len(ops)
    def hook():
        del ops[n0:]
        wait('S6'); flag(7)
    ln_out(a, 'J', hook)
    a('s_waitcnt vmcnt(0)\ns_barrier\ns_cmp_lg_u32 s20, 0\ns_cbranch_scc1 J_t4')
    ln_flag(a)
    a.label('J_t4')
    js(c, 99)
    a('s_branch M_roles')
    a.label('J_t2')
    hook()
    a('s_barrier')
    js(c, 99)
    a('s_branch M_roles')

def ln_x(a):
    srd(a, 8, KX, XSZ)
    a('s_lshl_b32 s27, s64, 2\ns_add_u32 s27, s27, s20\ns_mul_i32 s27, s27, 3584\nv_mul_u32_u24 v13, 0x380, v11\nv_lshl_add_u32 v13, v10, 3, v13')
    for i in range(7):
        a('buffer_load_dwordx2 %s, v13, s[8:11], s27 offen offset:%d' % (vr(230 + 2 * i, 2), 128 * i))

def ln_stats(a):
    X = lambda i: 32 + i
    for i in range(14):
        a('v_lshlrev_b32 v%d, 16, v%d\nv_and_b32 v%d, 0xffff0000, v%d' % (X(2 * i), 230 + i, X(2 * i + 1), 230 + i))
    def sum28(first, step):
        for k in range(4): first(k)
        for i in range(4, 28): step(i)
        a('v_add_f32 v16, v16, v17\nv_add_f32 v18, v18, v19\nv_add_f32 v16, v16, v18')
        for sh in (8, 4, 2, 1):
            a('s_nop 1\nv_add_f32_dpp v16, v16, v16 row_ror:%d row_mask:0xf bank_mask:0xf' % sh)
    def bfround(r):
        a('v_cvt_pk_bf16_f32 v%d, v%d, v%d\nv_lshlrev_b32 v%d, 16, v%d' % (r, r, r, r, r))
    sum28(lambda k: a('v_mov_b32 v%d, v%d' % (16 + k, X(k))), lambda i: a('v_add_f32 v%d, v%d, v%d' % (16 + i % 4, 16 + i % 4, X(i))))
    a('v_mul_f32 v20, 0x%x, v16' % f2u(1.0 / 448))
    sum28(lambda k: a('v_sub_f32 v21, v%d, v20\nv_mul_f32 v%d, v21, v21' % (X(k), 16 + k)),
          lambda i: a('v_sub_f32 v%d, v%d, v20\nv_fmac_f32 v%d, v%d, v%d' % (21 + i % 2, X(i), 16 + i % 4, 21 + i % 2, 21 + i % 2)))
    a('v_mul_f32 v16, 0x%x, v16' % f2u(1.0 / 448))
    bfround(16)
    a('v_add_f32 v16, 0x%x, v16' % f2u(1e-5))
    bfround(16)
    a('v_sqrt_f32 v16, v16\ns_nop 0')
    bfround(16)
    a('v_rcp_f32 v16, v16')
    bfround(20)

def ln_out(a, P, hook):
    X = lambda i: 32 + i
    a('s_lshl_b32 s26, s20, 2\nv_add_u32 v13, s26, v11\nv_lshrrev_b32 v14, 1, v13\nv_lshrrev_b32 v15, 1, v10\nv_xor_b32 v14, v14, v15')
    a('v_mul_u32_u24 v13, 0x380, v13\nv_lshl_add_u32 v13, v14, 4, v13\nv_and_b32 v14, 1, v10\nv_lshl_add_u32 v13, v14, 3, v13')
    for i in range(14):
        x0, x1 = X(2 * i), X(2 * i + 1)
        a('v_sub_f32 v%d, v%d, v20\nv_sub_f32 v%d, v%d, v20' % (x0, x0, x1, x1))
        a('v_cvt_pk_bf16_f32 v21, v%d, v%d' % (x0, x1))
        a('v_lshlrev_b32 v%d, 16, v21\nv_and_b32 v%d, 0xffff0000, v21' % (x0, x1))
        a('v_mul_f32 v%d, v16, v%d\nv_mul_f32 v%d, v16, v%d' % (x0, x0, x1, x1))
        a('v_cvt_pk_bf16_f32 v%d, v%d, v%d' % (230 + i, x0, x1))
        if i % 2: a('ds_write_b64 v13, %s offset:%d' % (vr(229 + i, 2), (i // 2) * 128))
    a('v_mul_u32_u24 v2, 0x380, v10\nv_lshrrev_b32 v3, 1, v10\ns_and_b32 s26, s20, 1\ns_waitcnt lgkmcnt(0)\ns_barrier')
    a('s_cmp_ge_u32 s20, 2\ns_cbranch_scc1 %s_k' % P)
    a('v_and_b32 v14, 1, v11\nv_lshl_add_u32 v2, v14, 3, v2\nv_lshrrev_b32 v14, 1, v11\nv_xor_b32 v3, v3, v14\ns_lshl_b32 s27, s26, 1\nv_xor_b32 v3, s27, v3')
    a('v_lshl_add_u32 v4, v3, 4, v2\nv_xor_b32 v3, 4, v3\nv_lshl_add_u32 v5, v3, 4, v2')
    for kk in range(7):
        a('ds_read_b64 %s, v4 offset:%d\nds_read_b64 %s, v5 offset:%d' % (vr(32 + 4 * kk, 2), 128 * kk, vr(34 + 4 * kk, 2), 128 * kk))
    a('s_mul_i32 s27, s64, 14336\ns_lshl_b32 s26, s26, 10\ns_add_u32 s26, s26, s27\ns_add_u32 s26, s26, 0x%x' % XP)
    a('s_waitcnt lgkmcnt(0)')
    for kk in range(7): a('v_swap_b32 v%d, v%d' % (33 + 4 * kk, 34 + 4 * kk))
    hook()
    for kk in range(7):
        a('buffer_store_dwordx4 %s, v12, s[4:7], s26 offen offset:%d sc1' % (vr(32 + 4 * kk, 4), (kk % 2) * 2048))
        if kk % 2: a('s_add_u32 s26, s26, 4096')
    a('s_branch %s_t3' % P)
    a.label(P + '_k')
    a('v_xor_b32 v3, v3, v11\ns_lshl_b32 s27, s26, 2\nv_xor_b32 v3, s27, v3\nv_lshl_add_u32 v4, v3, 4, v2')
    for u in range(7):
        a('ds_read_b128 %s, v4 offset:%d' % (vr(32 + 4 * u, 4), 128 * u))
    a('v_lshrrev_b32 v13, 1, v11\nv_and_b32 v14, 1, v11\nv_lshlrev_b32 v14, 9, v14\nv_lshl_add_u32 v14, v10, 4, v14\nv_lshl_add_u32 v14, v13, 10, v14')
    a('s_lshr_b32 s27, s64, 1\ns_lshl_b32 s27, s27, 15\ns_and_b32 s28, s64, 1\ns_lshl_b32 s28, s28, 11\ns_add_u32 s27, s27, s28\ns_add_u32 s27, s27, 0x%x' % XK)
    a('s_lshl_b32 s28, s26, 10\ns_add_u32 s28, s28, s27\ns_lshl_b32 s29, s26, 13\ns_add_u32 s29, s29, s27\ns_lshl_b32 s31, s26, 14\ns_add_u32 s31, s31, s27')
    hook()
    a('s_waitcnt lgkmcnt(0)')
    for u in range(7):
        if u < 4: dst = [(28, u * 8192, 12)]
        elif u < 6: dst = [(29, (u - 4) * 16384 + 4096, 14)]
        else: dst = [(31, k * 8192 + 4096 + 256, 14) for k in range(2)]
        for sb, off, vreg in dst:
            a('s_add_u32 s27, s%d, %d' % (sb, off))
            a('buffer_store_dwordx4 %s, v%d, s[4:7], s27 offen sc1' % (vr(32 + 4 * u, 4), vreg))
    a.label(P + '_t3')

def ln_flag(a):
    a('s_lshl_b32 s30, s64, 2\ns_add_u32 s30, s30, 0x%x' % LNF)
    a('v_mov_b32 v2, 1\ns_mov_b64 exec, 1\nbuffer_store_dword v2, off, s[4:7], s30 sc1\ns_mov_b64 exec, -1')

def gen_ln(c):
    a = c.a
    a.label('L_role')
    js(c, 0)
    a('s_lshl_b32 s24, s66, 2\ns_add_u32 s24, s24, s20\nv_lshlrev_b32 v12, 4, v1')
    a('v_and_b32 v10, 15, v1\nv_lshrrev_b32 v11, 4, v1\ns_mov_b32 s64, s66')
    ln_x(a)
    for r in range(4):
        a('v_mov_b32 v%d, -1\nv_mov_b32 v%d, 0' % (4 + r, 244 + r))
    a('s_cmp_lg_u32 s24, 1\ns_cbranch_scc1 L_nz\ns_mov_b32 s26, 0x%x' % FW)
    a('v_lshrrev_b32 v13, 3, v1\nv_mul_u32_u24 v13, %d, v13\nv_bfe_u32 v14, v1, 1, 2\nv_mul_u32_u24 v14, %d, v14\nv_add_u32 v13, v13, v14\nv_and_b32 v14, 1, v1\nv_lshl_add_u32 v13, v14, 4, v13' % (FS, WS))
    for i in range(4):
        a('buffer_store_dwordx4 v[244:247], v13, s[4:7], s26 offen sc1\ns_add_u32 s26, s26, %d' % (8 * FS))
    a('buffer_store_dwordx4 v[244:247], v12, s[4:7], s26 offen sc1')
    a('s_waitcnt vmcnt(0)\nv_mov_b32 v13, 1\ns_mov_b64 exec, 1\nbuffer_store_dword v13, off, s[16:19], 0 offset:%d sc1\ns_mov_b64 exec, -1' % I0)
    a.label('L_nz')
    a('s_lshl_b32 s26, s66, 12\nv_lshlrev_b32 v3, 4, v0\nv_add_u32 v3, s26, v3')
    srd(a, 12, 48, FLGSZ - 4096, FLG)
    a('buffer_store_dwordx4 v[244:247], v3, s[12:15], 0 offen sc1')
    for (base, size, f) in ((MEMX + 7168, MEMSZ - 7168, ' sc1'), (MEMC + 7168, MEMSZ - 7168, ' sc1'), (PC, PCSZ, ' sc1'), (VM + 63 * VMSEG, VMSEG, ' sc1'), (PX + 63 * PXSEG, PXSEG, ' sc1')):
        srd(a, 12, 48, size, base)
        for p in range((size + 131071) // 131072):
            a('s_mov_b32 s26, 0x%x' % (p * 131072))
            a('buffer_store_dwordx4 v[4:7], v3, s[12:15], s26 offen%s' % f)
    a('s_cmp_lg_u32 s24, 0\ns_cbranch_scc1 L_end')
    srd(a, 52, KM, 7168)
    a('v_lshrrev_b32 v11, 4, v1\nv_and_b32 v13, 7, v1\nv_mul_u32_u24 v13, 0x380, v13\nv_bfe_u32 v14, v1, 3, 1\nv_lshl_add_u32 v13, v14, 6, v13\nv_lshl_add_u32 v13, v11, 4, v13')
    for kk in range(7):
        a('buffer_load_dwordx4 %s, v13, s[52:55], 0 offen offset:%d' % (vr(140 + 4 * kk, 4), 128 * kk))
    a('s_waitcnt vmcnt(0)')
    for i in range(28):
        a('v_min_u32 v%d, -2, v%d' % (140 + i, 140 + i))
    for base, f in ((MEMC, ' sc1'), (MEMX, ' sc1')):
        for kk in range(7):
            a('s_mov_b32 s26, 0x%x' % (base + kk * 1024))
            a('buffer_store_dwordx4 %s, v12, s[4:7], s26 offen%s' % (vr(140 + 4 * kk, 4), f))
    a.label('L_end')
    a('s_waitcnt vmcnt(16)')
    ln_stats(a)
    ln_out(a, 'L', lambda: None)
    c.gate(lambda: wait_word(c, 'Li', I0, 1, 3))
    signal1(c)

def ln_load(a, r, early=False):
    a('s_mov_b32 s63, 0x%x' % LNF)
    a('buffer_load_dword v%d, v%d, s[4:7], s63 offen sc1' % (r, r + 3))
    a('v_mov_b32 v%d, 1' % (r + 1) if early else 'buffer_load_dword v%d, v%d, s[4:7], s63 offen offset:256 sc1' % (r + 1, r + 3))
def ln_test(a, r):
    a('v_min_u32 v%d, v%d, v%d\nv_cmp_eq_u32 vcc, 0, v%d' % (r, r, r + 1, r))
def ln_addr(a, r, lane, early=False):
    a('v_and_b32 v%d, %d, v%d\nv_lshlrev_b32 v%d, 2, v%d' % (r + 3, 31 if early else 63, lane, r + 3, r + 3))
def ln_wait1(c, name, r, early=False):
    a = c.a
    l = a.newlabel('one')
    a('s_cmp_lg_u32 s20, 0\ns_cbranch_scc1 %s' % l)
    ln_wait(c, name, r, 1, early)
    a.label(l)
    a('s_barrier')
def ln_wait(c, name, r, lane=1, early=False):
    a = c.a
    ln_addr(a, r, lane, early)
    l = c.spin_head(name)
    ln_load(a, r, early)
    a('s_waitcnt vmcnt(0)')
    ln_test(a, r)
    a('s_cbranch_vccnz %s' % l)
def ln_check(c, name, r, lane, early=False):
    a = c.a
    ok = a.newlabel(name + 'ok')
    ln_test(a, r)
    a('s_cbranch_vccz %s' % ok)
    ln_wait(c, name, r, lane, early)
    a.label(ok)

def signal1(c, n=0):
    a = c.a
    l = a.newlabel('sig')
    a('s_waitcnt vmcnt(%d)\ns_barrier\ns_cmp_lg_u32 s20, 0\ns_cbranch_scc1 %s' % (n, l))
    ln_flag(a)
    a.label(l)
    if c.opts.get('jst', 99) > 3: c.rt(1, False)

def fw_load(a, dst, vaddr, soff):
    a('buffer_load_dword v%d, v%d, s[4:7], s%d offen sc1' % (dst, vaddr, soff))

def fw_need(c, name, thr, dst, vaddr, soff):
    a = c.a
    ok = a.newlabel(name + 'ok')
    a('v_cmp_gt_u32 vcc, %s, v%d\ns_cbranch_vccz %s' % (thr, dst, ok))
    l = c.spin_head(name)
    fw_load(a, dst, vaddr, soff)
    a('s_waitcnt vmcnt(0)\nv_cmp_gt_u32 vcc, %s, v%d\ns_cbranch_vccnz %s' % (thr, dst, l))
    a.label(ok)

def wait_all(c, name, mreg_expr, ln=False):
    a = c.a
    a(mreg_expr)
    a('s_mul_i32 s26, s26, %d\ns_add_u32 s26, s26, 0x%x' % (FS, FW))
    one = a.newlabel('one')
    if c.opts.get('one', 1): a('s_cmp_lg_u32 s20, 0\ns_cbranch_scc1 %s' % one)
    a('v_and_b32 v3, 7, v1\nv_min_u32 v3, 6, v3\nv_bfe_u32 v4, v1, 3, 2\nv_mul_u32_u24 v4, %d, v4\nv_lshl_add_u32 v3, v3, 2, v4' % WS)
    if ln: ln_addr(a, 8, 1, True)
    l = c.spin_head(name)
    fw_load(a, 4, 3, 26)
    if ln: ln_load(a, 8, True)
    a('s_waitcnt vmcnt(0)\nv_cmp_gt_u32 vcc, 7, v4\ns_cbranch_vccnz %s' % l)
    if ln:
        ln_test(a, 8)
        a('s_cbranch_vccnz %s' % l)
    a.label(one)
    if c.opts.get('one', 1): a('s_barrier')
```

```python
from asm import *
from layout import *
from prep import srd, f2u

OOB = 0x40000000
DUMMY = TS + (1 << 20) - 65536
NEGBIG = f2u(-1.4426950e9)

def WREG(b):
    return 256 + 8 * b if b < 32 else 120 + 8 * (b - 32)

class Ctx:
    def __init__(self, a, opts):
        self.a = a; self.opts = opts
        self.ts = opts.get('ts', 0)
    def spin_head(self, name):
        l = self.a.newlabel(name)
        self.a.label(l)
        self.a('s_sub_u32 s23, s23, 1\ns_cbranch_scc1 M_exit')
        return l
    def check_poison(self, regs, tmp):
        a = self.a
        a('v_max3_u32 v%d, v%d, v%d, v%d' % (tmp, regs[0], regs[1], regs[2]))
        i = 3
        while i + 1 < len(regs):
            a('v_max3_u32 v%d, v%d, v%d, v%d' % (tmp, tmp, regs[i], regs[i + 1])); i += 2
        if i < len(regs):
            a('v_max_u32 v%d, v%d, v%d' % (tmp, tmp, regs[i]))
        a('v_cmp_eq_u32 vcc, -1, v%d' % tmp)
    def wait_flags(self, name, soff, n, tmp):
        a = self.a
        l = self.spin_head(name)
        a('buffer_load_dword%s %s, off, s[4:7], s%d sc1' % ('' if n == 1 else 'x%d' % n, vr(tmp, n), soff))
        a('s_waitcnt vmcnt(0)')
        for i in range(1, n):
            a('v_min_u32 v%d, v%d, v%d' % (tmp, tmp, tmp + i))
        a('v_cmp_eq_u32 vcc, 0, v%d\ns_cbranch_vccnz %s' % (tmp, l))
    def poll(self, name, loads, regs, tmp, depth, pre=None):
        a = self.a
        for d in range(depth - 1):
            for l in loads: a(l)
        lab = self.spin_head(name)
        for l in loads: a(l)
        a('s_waitcnt vmcnt(%d)' % (len(loads) * (depth - 1)))
        if pre: pre()
        self.check_poison(regs, tmp)
        a('s_cbranch_vccnz %s' % lab)
    def rt(self, i, wait=True):
        if self.opts.get('rt', 0):
            if wait: self.a('s_waitcnt vmcnt(0)')
            self.a('s_memrealtime s[%d:%d]\ns_waitcnt lgkmcnt(0)' % (90 + 2 * i, 91 + 2 * i))
            if self.opts.get('clk', 0) and i >= 2:
                self.a('s_memtime s[%d:%d]\ns_waitcnt lgkmcnt(0)' % (86 + 2 * i, 87 + 2 * i))
    def gate(self, fn, wave=0, on=1):
        if not on: return fn()
        l = self.a.newlabel('gate')
        self.a('s_cmp_lg_u32 s20, %d\ns_cbranch_scc1 %s' % (wave, l))
        fn()
        self.a.label(l)
        self.a('s_barrier')
    def probe(self, name, sreg, tmp):
        l = self.spin_head(name)
        self.a('buffer_load_dword v%d, off, s[4:7], s%d sc1\ns_waitcnt vmcnt(0)\nv_cmp_eq_u32 vcc, -1, v%d\ns_cbranch_vccnz %s' % (tmp, sreg, tmp, l))
    def ws(self, i):
        if self.opts.get('wst', 0): self.a('s_memrealtime s[%d:%d]' % (64 + 2 * i, 65 + 2 * i))
    def wflush(self, role, sub, tmp, seg=24):
        if not self.opts.get('wst', 0): return
        a = self.a
        a('s_waitcnt lgkmcnt(0)\ns_lshl_b32 s62, s%d, 4\ns_add_u32 s62, s62, s%d\ns_lshl_b32 s62, s62, 4\ns_add_u32 s62, s62, 0x%x' % (seg, sub, TS + 0x40000 + role * 0x4000))
        for i in range(4): a('v_mov_b32 v%d, s%d' % (tmp + i, 64 + 2 * i))
        a('s_mov_b64 exec, 1\nbuffer_store_dwordx4 %s, off, s[4:7], s62\ns_mov_b64 exec, -1\ns_nop 1' % vr(tmp, 4))
        if self.opts.get('dbgt', 0) and role < 3:
            l = a.newlabel('dg')
            a('s_cmp_lg_u32 s24, 63\ns_cbranch_scc1 %s\ns_mov_b64 exec, 1' % l)
            for i, wd in {0: ((1, 13), (2, 14), (3, 15)), 1: ((1, 10), (3, 11)), 2: ((2, 5),)}[role]:
                a('buffer_atomic_umax v%d, off, s[16:19], 0 offset:%d' % (tmp + i, 4 * wd))
            a('s_mov_b64 exec, -1')
            a.label(l)
    def end(self):
        self.a('s_branch M_exit' if self.opts.get('rt', 0) else 's_endpgm')
    def stamp(self, i):
        if self.ts:
            self.a('%s s[%d:%d]' % ('s_memrealtime' if self.ts == 2 else 's_memtime', 64 + 2 * i, 65 + 2 * i))
    def flush_stamps(self, n, role_slot_sgpr, tmp):
        if not self.ts: return
        a = self.a
        a('s_waitcnt lgkmcnt(0)')
        a('s_lshl_b32 s62, s%d, 6\ns_add_u32 s62, s62, s24\ns_lshl_b32 s62, s62, 6\ns_add_u32 s62, s62, 0x%x' % (role_slot_sgpr, TS))
        for i in range(n):
            a('v_writelane_b32 v%d, s%d, %d' % (tmp, 64 + 2 * i, i))
        a('v_writelane_b32 v%d, s23, 15' % tmp)
        a('v_mbcnt_lo_u32_b32 v%d, -1, 0\nv_lshlrev_b32 v%d, 2, v%d' % (tmp + 1, tmp + 1, tmp + 1))
        a('s_mov_b64 exec, 0xffff')
        a('buffer_store_dword v%d, v%d, s[4:7], s62 offen' % (tmp, tmp + 1))
        a('s_mov_b64 exec, -1')

def load_weights(a, blocks, sbase, vl16, mid=None):
    n = 0
    for reg, off in blocks:
        a('s_add_u32 s63, s%d, 0x%x' % (sbase, off))
        a('buffer_load_dwordx4 %s, v%d, s[4:7], s63 offen' % (R(reg, 4), vl16))
        a('buffer_load_dwordx4 %s, v%d, s[4:7], s63 offen offset:1024' % (R(reg + 4, 4), vl16))
        n += 2
        if mid and n == 40: mid()
        if n > 48 and n % 8 == 0:
            a('s_waitcnt vmcnt(48)')

def smf(a, d, x, wreg, idx):
    a('v_smfmac_f32_16x16x64_bf16 %s, %s, %s, v%d' % (vr(d, 4), vr(x, 4), R(wreg, 8), idx))
def cvt(a, d, s0, s1):
    a('v_cvt_pk_bf16_f32 v%d, v%d, v%d' % (d, s0, s1))

def gen_chainA(c, w):
    a = c.a
    M = lambda p: 4 * p if p < 3 else 4 * p + 4
    ACC = lambda t: 32 + 4 * t
    KEY0 = [60, 68, 76]
    KEY1 = [8, 0, ACC(3)]
    A2a, A2b, D2a, D2b, TS0, TS1 = 84, 88, 92, 96, 100, 104
    SEL, IDX, VL, VMK0, VMK1, VSW, VSR0, VSR, VPST = 108, 112, 113, 114, 115, 116, 117, 118, 119
    SEL6 = SEL + 2 * (w % 2)
    XKL = 8192 + w * 8192; SB = 40960; NEG = 47616
    kk = lambda p: (2 * w + p) % 7
    a.label('A_w%d' % w)
    a('v_mov_b32 v%d, v1\nv_lshlrev_b32 v%d, 4, v1' % (A2a, VL))
    LN = A2a
    a('s_mul_i32 s26, s25, 0x%x\ns_add_u32 s26, s26, 0x%x' % (MAT, AFR + w * 49 * 2048))
    if c.opts.get('fuse', 1):
        import fused as F
        a('v_and_b32 v85, 7, v1\nv_min_u32 v85, 6, v85\nv_lshlrev_b32 v85, 2, v85\ns_mul_i32 s27, s25, %d\ns_add_u32 s27, s27, 0x%x' % (F.FS, F.FW + 16 * F.FS + F.WS * w))
        a('v_mov_b32 v86, 0')
        F.ln_addr(a, 88, 1, True)
        for t in range(7):
            F.fw_need(c, 'Aw', t + 1, 86, 85, 27)
            F.js(c, 30 + t)
            gr = c.opts.get('greedy', 1)
            l1, l2 = a.newlabel('Ag'), a.newlabel('Ag')
            if t == 4: F.ln_load(a, 88, True)
            if t < 6:
                if gr: a('v_cmp_gt_u32 vcc, %d, v86\ns_cbranch_vccz %s' % (t + 2, l1))
                F.fw_load(a, 86, 85, 27)
                a.label(l1)
            load_weights(a, [(WREG(t * 7 + p), (t * 7 + kk(p)) * 2048) for p in range(7)], 26, VL)
            if t < 6:
                if gr: a('s_waitcnt vmcnt(%d)\ns_cbranch_vccz %s' % (c.opts.get('gw', 42), l2))
                a('s_waitcnt vmcnt(14)')
                a.label(l2)
        a('s_waitcnt vmcnt(42)')
        F.ln_check(c, 'Ai', 88, LN, True)
    else:
        load_weights(a, [(WREG(t * 7 + p), (t * 7 + kk(p)) * 2048) for p in range(7) for t in range(7)], 26, VL)
    a('v_and_b32 v0, 15, v%d\nv_lshrrev_b32 v1, 4, v%d\nv_and_b32 v2, 7, v%d\nv_bfe_u32 v3, v%d, 3, 1' % (LN, LN, LN, LN))
    a('v_mov_b32 v4, 0x4444\nv_mov_b32 v5, 0xeeee\nv_cmp_eq_u32 vcc, 1, v3\ns_nop 1\nv_cndmask_b32 v%d, v4, v5, vcc' % IDX)
    a('v_and_b32 v4, 1, v1\nv_lshlrev_b32 v4, 2, v4\nv_sub_u32 v4, v2, v4')
    for dw in range(2):
        a('v_mov_b32 v6, 0')
        a('v_cmp_eq_u32 vcc, %d, v4\nv_mov_b32 v5, 0x3f80\ns_nop 0\nv_cndmask_b32 v6, v6, v5, vcc' % (2 * dw))
        a('v_cmp_eq_u32 vcc, %d, v4\nv_mov_b32 v5, 0x3f800000\ns_nop 0\nv_cndmask_b32 v6, v6, v5, vcc' % (2 * dw + 1))
        a('v_cmp_eq_u32 vcc, 0, v3\ns_nop 1\nv_cndmask_b32 v%d, 0, v6, vcc' % (SEL + dw))
        a('v_cmp_eq_u32 vcc, 1, v3\ns_nop 1\nv_cndmask_b32 v%d, 0, v6, vcc' % (SEL + 2 + dw))
    a('v_lshlrev_b32 v4, 4, v2\nv_lshl_add_u32 v%d, v1, 8, v4' % VMK0)
    a('v_lshrrev_b32 v5, 1, v1\nv_lshl_add_u32 v4, v5, 8, v4')
    a('v_and_b32 v6, 1, v1\nv_cmp_eq_u32 vcc, 1, v6')
    a('v_mov_b32 v7, %d\nv_mov_b32 v8, %d\nv_cndmask_b32 v7, v7, v8, vcc\nv_add_u32 v%d, v4, v7' % ((4 + w // 2) * 1024 + (w % 2) * 128, 6 * 1024 + (w // 2) * 128, VMK1))
    a('v_lshl_add_u32 v4, v6, 2, v5\nv_mul_u32_u24 v4, 208, v4\nv_lshl_add_u32 v4, v0, 2, v4\nv_add_u32 v%d, %d, v4' % (VSW, SB + w * 1664))
    a('v_lshrrev_b32 v4, 5, v%d\nv_and_b32 v9, 31, v%d' % (LN, LN))
    a('v_bfe_u32 v12, v9, 2, 1\nv_and_b32 v13, 2, v9\nv_or_b32 v12, v12, v13\nv_bfe_u32 v13, v9, 3, 1\nv_lshl_or_b32 v12, v13, 2, v12\nv_and_b32 v13, 1, v9\nv_lshl_or_b32 v12, v13, 3, v12')
    a('v_bfe_u32 v14, v9, 1, 1\nv_lshl_or_b32 v13, v13, 1, v14\nv_or_b32 v13, 16, v13')
    a('v_cmp_gt_u32 s[28:29], 20, v9\nv_cmp_gt_u32 vcc, 16, v9\nv_add_u32 v10, %d, v4\nv_mul_u32_u24 v11, 208, v10' % (2 * w))
    a('v_cndmask_b32 v9, v13, v12, vcc')
    a('v_cndmask_b32 v12, 0, v9, s[28:29]\nv_lshl_add_u32 v11, v12, 3, v11\nv_add_u32 v%d, %d, v11' % (VSR, SB))
    a('v_mov_b32 v12, %d\nv_cndmask_b32 v%d, v12, v%d, s[28:29]' % (NEG, VSR0, VSR))
    a('s_and_b32 s27, s25, 1\ns_bfe_u32 s30, s25, 0x10001\ns_lshr_b32 s31, s25, 2')
    a('v_bfe_u32 v12, v9, 2, 1\nv_lshlrev_b32 v12, 8, v12')
    a('v_and_b32 v13, 1, v9\nv_lshl_add_u32 v12, v13, 7, v12')
    a('v_bfe_u32 v14, v9, 1, 1\nv_lshl_add_u32 v12, v14, 3, v12')
    a('v_bfe_u32 v15, v9, 3, 1\nv_lshl_add_u32 v12, v15, 2, v12')
    a('s_lshl_b32 s32, s30, 10\ns_lshl_b32 s33, s27, 9\ns_add_u32 s32, s32, s33\nv_add_u32 v12, s32, v12')
    a('v_lshlrev_b32 v14, 3, v14\nv_lshl_add_u32 v14, v13, 7, v14')
    a('s_lshl_b32 s32, s27, 2\ns_lshl_b32 s33, s30, 8\ns_add_u32 s32, s32, s33\ns_add_u32 s32, s32, 2048\nv_add_u32 v14, s32, v14')
    a('v_cmp_gt_u32 vcc, 16, v9\ns_nop 1\nv_cndmask_b32 v12, v14, v12, vcc\nv_lshl_add_u32 v12, v10, 4, v12')
    a('s_mul_i32 s32, s31, 2560\nv_add_u32 v12, s32, v12\nv_mov_b32 v13, 0x%x\nv_cndmask_b32 v%d, v13, v12, s[28:29]' % (OOB, VPST))
    if w == 0:
        a('v_mov_b32 v4, 0xff800000\nv_mov_b32 v5, v4\nv_mov_b32 v6, %d\nds_write_b64 v6, v[4:5]' % NEG)
    a('s_mov_b64 s[56:57], s[28:29]\ns_mov_b32 s33, 0x%x' % f2u(64.0))
    a('s_mov_b32 s24, 0\ns_mov_b32 s26, 0x%x\ns_mov_b32 s27, 0x%x\ns_mov_b32 s28, 0x%x' % (MEMC, PC, XK + w * 8192))
    def dk(i):
        if i == 0: a('s_mov_b32 m0, %d\ns_add_u32 s29, s28, 4096' % XKL)
        if i == 6: a('s_mov_b32 m0, %d\ns_nop 0' % (XKL + 4096))
        a('buffer_load_dwordx4 v%d, s[4:7], s%d offen offset:%d lds' % (VL, 28 + i // 4, (i % 4) * 1024))
    for i in (0, 1, 2, 3, 6, 7, 4, 5): dk(i)
    a('s_add_u32 s28, s28, 32768')
    def ld_keys():
        a('s_waitcnt vmcnt(0)')
        for i in range(4):
            a('ds_read_b128 %s, v%d offset:%d' % (vr(KEY0[0] + 4 * i, 4), VL, XKL + i * 1024))
    selfp = c.opts.get('selfp', 0)
    if selfp:
        a('v_mov_b32 v0, -1\ns_add_u32 s29, s27, 10240')
        a('buffer_store_dword v0, v%d, s[4:7], s27 offen\nbuffer_store_dword v0, v%d, s[4:7], s29 offen' % (VPST, VPST))
    top = 'A_top%d' % w
    c.rt(2)
    a.label(top)
    ld_keys()
    for r in range(14):
        a('v_mov_b64 %s, 0' % vr(ACC(0) + 2 * r, 2))
    a('s_add_u32 s30, s26, %d\ns_add_u32 s31, s26, %d\ns_waitcnt lgkmcnt(0)' % (kk(0) * 1024, kk(1) * 1024))
    c.stamp(0)
    def wr_m():
        a('ds_write_b128 v%d, %s offset:%d' % (VL, vr(M(0), 4), kk(0) * 1024))
        if w < 3:
            a('ds_write_b128 v%d, %s offset:%d' % (VL, vr(M(1), 4), kk(1) * 1024))
    early = c.opts.get('da', 2) == 1
    c.poll('Apoll', ['buffer_load_dwordx4 %s, v%d, s[4:7], s%d offen sc1' % (vr(M(p), 4), VL, 30 + p) for p in range(2)],
           list(range(8)), A2a, c.opts.get('da', 2), wr_m if early else None)
    c.stamp(1)
    T = lambda t, p: smf(a, ACC(t), M(p), WREG(t * 7 + p), IDX)
    if not early: wr_m()
    nb = c.opts.get('nb', 6)
    for t in range(nb): T(t, 0)
    a('s_waitcnt lgkmcnt(0)\ns_barrier')
    def rdkey(blk, tau, aa):
        dst = (KEY0 if blk == 0 else KEY1)[tau] + 4 * aa
        if tau < 2:
            a('ds_read_b128 %s, v%d offset:%d' % (vr(dst, 4), VL, XKL + (blk * 4 + tau * 2 + aa) * 1024))
        elif blk == 0:
            a('ds_read_b128 %s, v%d offset:%d' % (vr(dst, 4), VMK0, w * 1024 + aa * 128))
        else:
            a('ds_read_b128 %s, v%d offset:%d' % (vr(dst, 4), VMK1, aa * 512))
    RK = lambda *x: (lambda: rdkey(*x))
    RM = lambda p: (lambda: a('ds_read_b128 %s, v%d offset:%d' % (vr(M(p), 4), VL, kk(p) * 1024)))
    def CV(src, dst, h): return lambda: cvt(a, dst + h, src + 2 * h, src + 2 * h + 1)
    def Z(t, h): return lambda: a('v_mov_b64 %s, 0' % vr(ACC(t) + 2 * h, 2))
    def mt(d, src): return lambda: a('v_mfma_f32_16x16x32_bf16 %s, %s, %s, 0' % (vr(d, 4), vr(src, 4), vr(SEL, 4)))
    S = lambda tau, blk: (lambda: smf(a, ACC(tau), TS0 if blk == 0 else TS1, (KEY0 if blk == 0 else KEY1)[tau], IDX))
    DK = lambda i: (lambda: dk(i))
    W = lambda x: (lambda: a(x))
    RM(2)(); RM(3)()
    seq = [(t, 0) for t in range(nb, 7)] + [(t, 1) for t in range(7)]
    f1 = [RM(4), RM(5), RM(6), RK(0, 2, 0), RK(0, 2, 1)]
    for n, (t, p) in enumerate(seq):
        T(t, p)
        if n < len(f1): f1[n]()
    a('s_waitcnt lgkmcnt(6)')
    f2 = [[W('s_waitcnt vmcnt(0)'), RK(1, 1, 0)], [RK(1, 1, 1)], [], [DK(0)], [], [DK(1)], []]
    for t in range(7):
        T(t, 2)
        for f in f2[t]: f()
    a('s_waitcnt lgkmcnt(4)')
    dkt = c.opts.get('dkt', 0)
    fill = [
        [[RK(1, 0, 0)], [RK(1, 0, 1)], [DK(2)], []],
        [[DK(3)], [CV(ACC(0), A2a, 0)], [CV(ACC(0), A2a, 1)], [Z(0, 0)]],
        [[Z(0, 1)], [CV(ACC(1), A2a + 2, 0)], [CV(ACC(1), A2a + 2, 1)], [Z(1, 0), mt(D2a, A2a), W('s_waitcnt lgkmcnt(0)'), DK(6)] + ([DK(4)] if dkt else [])],
        [[Z(1, 1)], [CV(ACC(2), A2b, 0)], [CV(ACC(2), A2b, 1)], [CV(D2a, TS0, 0)]],
        [[CV(D2a, TS0, 1)], [CV(ACC(3), A2b + 2, 0)], [CV(ACC(3), A2b + 2, 1)], [Z(2, 0), mt(D2b, A2b), DK(7)] + ([DK(5)] if dkt else [])],
        [[Z(2, 1)], [CV(ACC(4), A2a, 0)], [CV(ACC(4), A2a, 1)], [CV(D2b, TS0 + 2, 0)]],
        [[CV(D2b, TS0 + 2, 1)], [CV(ACC(5), A2a + 2, 0)], [CV(ACC(5), A2a + 2, 1)], [RK(1, 2, 0)]],
    ]
    for t in range(7):
        for j in range(4):
            T(t, 3 + j)
            for f in fill[t][j]: f()
    c.stamp(2)
    mt(D2a, A2a)()
    RK(1, 2, 1)()
    S(0, 0)()
    CV(ACC(6), A2b, 0)(); CV(ACC(6), A2b, 1)()
    a('s_nop 1')
    a('v_mfma_f32_16x16x16_bf16 %s, %s, %s, 0' % (vr(D2b, 4), vr(A2b, 2), vr(SEL6, 2)))
    CV(D2a, TS1, 0)()
    S(1, 0)()
    CV(D2a, TS1, 1)()
    S(2, 0)()
    CV(D2b, TS1 + 2, 0)(); CV(D2b, TS1 + 2, 1)()
    a('s_waitcnt lgkmcnt(0)\ns_nop 0')
    S(0, 1)(); S(1, 1)(); S(2, 1)()
    col = [0, 64, 128]
    for tau in range(3):
        r = ACC(tau)
        if tau == 2: a('s_nop 0')
        a('v_permlane32_swap_b32 v%d, v%d\nv_permlane32_swap_b32 v%d, v%d' % (r, r + 1, r + 2, r + 3))
        a('v_add_f32 v%d, v%d, v%d\nv_add_f32 v%d, v%d, v%d' % (r, r, r + 1, r + 2, r + 2, r + 3))
        a('ds_write2_b32 v%d, v%d, v%d offset0:%d offset1:%d' % (VSW, r, r + 2, col[tau] // 4, col[tau] // 4 + 104))
    a('s_waitcnt lgkmcnt(0)\ns_barrier')
    c.stamp(3)
    q = 44
    a('ds_read_b64 %s, v%d' % (vr(q, 2), VSR0))
    for p in range(1, 4):
        a('ds_read_b64 %s, v%d offset:%d' % (vr(q + 2 * p, 2), VSR, p * 1664))
    if not dkt: dk(4); dk(5)
    a('s_waitcnt lgkmcnt(2)')
    a('v_add_f32 v%d, v%d, v%d\nv_add_f32 v%d, v%d, v%d' % (q, q, q + 2, q + 1, q + 1, q + 3))
    a('s_waitcnt lgkmcnt(0)')
    a('v_add_f32 v%d, v%d, v%d\nv_add_f32 v%d, v%d, v%d' % (q + 4, q + 4, q + 6, q + 5, q + 5, q + 7))
    a('v_add_f32 v%d, v%d, v%d\nv_add_f32 v%d, v%d, v%d' % (q + 4, q, q + 4, q + 5, q + 1, q + 5))
    def reduce32(op, r, tmp):
        for sh in (8, 4, 2, 1):
            a('s_nop 1\n%s_dpp v%d, v%d, v%d row_ror:%d row_mask:0xf bank_mask:0xf' % (op, r, r, r, sh))
        a('v_mov_b32 v%d, v%d\ns_nop 1\nv_permlane16_swap_b32 v%d, v%d\n%s v%d, v%d, v%d' % (tmp, r, tmp, r, op, r, r, tmp))
    def truemax():
        a('v_max_f32 v%d, v%d, v%d' % (q + 2, q + 4, q + 5))
        reduce32('v_max_f32', q + 2, q + 3)
        a('v_sub_f32 v%d, v%d, v%d\nv_sub_f32 v%d, v%d, v%d' % (q, q + 4, q + 2, q + 1, q + 5, q + 2))
        a('v_exp_f32 v%d, v%d\nv_exp_f32 v%d, v%d\ns_nop 0' % (q, q, q + 1, q + 1))
    fast = c.opts.get('fast', 1)
    if fast:
        a('v_max_f32 v%d, |v%d|, |v%d|' % (q + 2, q + 4, q + 5))
        a('v_exp_f32 v%d, v%d\nv_cmp_lt_f32 vcc, s33, v%d\nv_exp_f32 v%d, v%d' % (q, q + 4, q + 2, q + 1, q + 5))
        a('s_and_b64 vcc, vcc, s[56:57]\ns_cbranch_scc1 A_max%d' % w)
        a.label('A_sum%d' % w)
    else:
        truemax()
    a('v_add_f32 v%d, v%d, v%d' % (q + 2, q, q + 1))
    reduce32('v_add_f32', q + 2, q + 3)
    a('v_rcp_f32 v%d, v%d\ns_nop 0' % (q + 2, q + 2))
    a('v_mul_f32 v%d, v%d, v%d\nv_mul_f32 v%d, v%d, v%d' % (q, q, q + 2, q + 1, q + 1, q + 2))
    cvt(a, q, q, q + 1)
    a('v_min_u32 v%d, -2, v%d' % (q, q))
    a('buffer_store_dword v%d, v%d, s[4:7], s27 offen' % (q, VPST))
    c.stamp(4)
    if c.opts.get('ackw', 0):
        a('s_waitcnt vmcnt(0)')
        c.stamp(5)
    if selfp:
        a('s_add_u32 s29, s27, 20480\ns_cmp_lt_u32 s24, 61\ns_cselect_b32 s29, s29, 0x%x\nv_mov_b32 v%d, -1' % (DUMMY, q + 1))
        a('buffer_store_dword v%d, v%d, s[4:7], s29 offen' % (q + 1, VPST))
    c.flush_stamps(6, 59, q + 4)
    a('s_add_u32 s24, s24, 1\ns_add_u32 s26, s26, 7168\ns_add_u32 s27, s27, 10240\ns_add_u32 s28, s28, 32768')
    a('s_cmp_lt_u32 s24, 63\ns_cbranch_scc1 %s' % top)
    c.end()
    if fast:
        a.label('A_max%d' % w)
        truemax()
        a('s_branch A_sum%d' % w)

def gen_chainB(c):
    a = c.a
    M = lambda k: 4 * k
    UU = lambda q, tau: 28 + 16 * q + 8 * tau
    VA = lambda i: (60, 64, 116)[i]
    VMR = lambda tau: 68 + 8 * tau
    ST = [84, 92]
    IDX, VL, VP0, VP1, VPM, VRW, VRR, VMS, VFL, TMP = 100, 101, 102, 103, 104, 105, 106, 107, 108, 109
    RB = 8192; WL = 16384
    a.label('B_role')
    LN = 110
    a('v_mov_b32 v%d, v1\nv_lshlrev_b32 v%d, 4, v1' % (LN, VL))
    a('s_mul_i32 s26, s20, 0x%x\ns_mul_i32 s27, s25, %d\ns_add_u32 s26, s26, s27\ns_add_u32 s26, s26, 0x%x' % (4 * MAT, 2 * 7 * 2048, BFR))
    tiles = [(2 * q + hp, tau) for q in range(2) for tau in range(2) for hp in range(2)]
    fuse = c.opts.get('fuse', 1)
    mid = None
    if fuse:
        import fused as F
        a('v_and_b32 v85, 7, v1\nv_min_u32 v85, 6, v85\nv_bfe_u32 v86, v1, 3, 1\nv_mul_u32_u24 v86, %d, v86\nv_add_u32 v85, v85, v86\nv_lshrrev_b32 v86, 4, v1\nv_mul_u32_u24 v86, %d, v86\nv_lshl_add_u32 v85, v85, 2, v86' % (F.WS // 4, F.FS))
        a('s_mul_i32 s27, s20, %d\ns_and_b32 s28, s25, 1\ns_mul_i32 s28, s28, %d\ns_add_u32 s27, s27, s28\ns_add_u32 s27, s27, 0x%x' % (4 * F.FS, 2 * F.WS, F.FW))
        a('s_lshr_b32 s28, s25, 1\ns_lshl_b32 s29, s20, 1\ns_sub_u32 s28, s28, s29\ns_cselect_b32 s29, 8, 1\ns_add_u32 s28, s28, s29')
        a('v_mov_b32 v86, 0')
        F.fw_need(c, 'Bw', 's28', 86, 85, 27)
        if 30 <= c.opts.get('jst', 0) < 40: c.rt(1, False)
        F.ln_addr(a, 88, 1, True)
        mid = lambda: F.ln_load(a, 88, True)
    a('s_mul_i32 s34, s20, 14336\ns_add_u32 s34, s34, %d' % WL)
    hl, tau = tiles[7]
    for i in range(14):
        a('s_add_u32 m0, s34, %d\ns_add_u32 s63, s26, 0x%x' % (i * 1024, hl * MAT + tau * 7 * 2048 + i * 1024))
        a('buffer_load_dwordx4 v%d, s[4:7], s63 offen lds' % VL)
    load_weights(a, [(WREG(tt * 7 + k), tiles[tt][0] * MAT + (tiles[tt][1] * 7 + k) * 2048) for tt in range(7) for k in range(7)], 26, VL, mid)
    if fuse: F.ln_check(c, 'Bi', 88, LN, True)
    a('v_and_b32 v0, 15, v%d\nv_lshrrev_b32 v1, 4, v%d\nv_and_b32 v2, 7, v%d\nv_bfe_u32 v3, v%d, 3, 1' % (LN, LN, LN, LN))
    a('v_mov_b32 v4, 0x4444\nv_mov_b32 v5, 0xeeee\nv_cmp_eq_u32 vcc, 1, v3\ns_nop 1\nv_cndmask_b32 v%d, v4, v5, vcc' % IDX)
    a('v_lshrrev_b32 v4, 1, v1\nv_lshlrev_b32 v4, 8, v4\nv_lshl_add_u32 v4, v0, 4, v4\nv_add_u32 v%d, 2048, v4' % VPM)
    a('s_lshl_b32 s27, s20, 11\ns_add_u32 s28, s27, 1024\ns_min_u32 s28, s28, 6144')
    a('v_add_u32 v%d, s27, v%d\nv_add_u32 v%d, s28, v%d' % (VP0, VL, VP1, VL))
    a('v_and_b32 v6, 1, v1\nv_lshrrev_b32 v5, 1, v1\nv_lshl_add_u32 v4, v6, 2, v5\nv_mul_u32_u24 v4, 144, v4\nv_lshl_add_u32 v4, v0, 2, v4')
    a('s_mul_i32 s27, s20, 1152\ns_add_u32 s27, s27, %d\nv_add_u32 v%d, s27, v4' % (RB, VRW))
    a('v_bfe_u32 v4, v%d, 2, 3\nv_and_b32 v5, 3, v%d\nv_mul_u32_u24 v6, 144, v4\nv_lshl_add_u32 v6, v5, 3, v6' % (LN, LN))
    a('s_lshl_b32 s27, s20, 5\ns_add_u32 s27, s27, %d\nv_add_u32 v%d, s27, v6' % (RB, VRR))
    a('s_lshr_b32 s27, s25, 1\ns_lshl_b32 s27, s27, 10\ns_and_b32 s28, s25, 1\ns_lshl_b32 s28, s28, 7\ns_add_u32 s27, s27, s28\ns_lshl_b32 s28, s20, 8\ns_add_u32 s27, s27, s28')
    a('v_lshlrev_b32 v6, 2, v%d\nv_add_u32 v6, s27, v6\nv_mov_b32 v7, 0x%x\nv_cmp_gt_u32 vcc, 32, v%d\ns_nop 1\nv_cndmask_b32 v%d, v7, v6, vcc' % (LN, OOB, LN, VMS))
    a('s_lshl_b32 s27, s20, 2\nv_lshlrev_b32 v6, 4, v%d\nv_add_u32 v%d, s27, v6\ns_mov_b32 s33, 0x1010101' % (LN, VFL))
    a('v_add_u32 v%d, s34, v%d' % (LN, VL))
    VWL = LN
    a('s_mov_b32 s24, 0\ns_mov_b32 s26, 0x%x\ns_mov_b64 s[60:61], 0' % MEMC)
    a('s_mul_i32 s27, s20, 2560\ns_add_u32 s27, s27, 0x%x' % PC)
    a('s_mul_i32 s28, s20, %d\ns_lshl_b32 s29, s25, 11\ns_add_u32 s28, s28, s29\ns_add_u32 s28, s28, 0x%x' % (4 * 28 * 1024, UB))
    a('s_mov_b32 s35, 0x%x' % FLG_U)
    selfp = c.opts.get('selfp', 0)
    if selfp:
        a('v_mov_b32 v0, -1\ns_add_u32 s31, s26, 7168\ns_add_u32 s32, s26, 14336')
        a('buffer_store_dword v0, v%d, s[4:7], s31 offen\nbuffer_store_dword v0, v%d, s[4:7], s32 offen' % (VMS, VMS))
    if c.opts.get('pu', 1):
        a('buffer_load_dword v111, v%d, s[4:7], s35 offen sc1\ns_waitcnt vmcnt(0)\nv_cmp_eq_u32 s[60:61], s33, v111' % VFL)
    c.rt(2)
    a.label('B_top')
    c.stamp(0)
    l = c.spin_head('Bpoll')
    a('buffer_load_dwordx4 %s, v%d, s[4:7], s26 offen sc1' % (vr(ST[0], 4), VP0))
    a('buffer_load_dwordx4 %s, v%d, s[4:7], s26 offen sc1' % (vr(ST[0] + 4, 4), VP1))
    a('s_waitcnt vmcnt(0)')
    c.check_poison(list(range(ST[0], ST[0] + 8)), TMP)
    a('s_cbranch_vccnz %s' % l)
    c.stamp(1)
    a('ds_write_b128 v%d, %s\nds_write_b128 v%d, %s' % (VP0, vr(ST[0], 4), VP1, vr(ST[0] + 4, 4)))
    a('s_bitcmp1_b64 s[60:61], s24\ns_cbranch_scc1 B_uok')
    l = c.spin_head('Bufl')
    a('buffer_load_dword v111, v%d, s[4:7], s35 offen sc1\ns_waitcnt vmcnt(0)' % VFL)
    a('v_cmp_eq_u32 s[60:61], s33, v111\ns_nop 1')
    a('s_bitcmp0_b64 s[60:61], s24\ns_cbranch_scc1 %s' % l)
    a.label('B_uok')
    def ldu(i):
        q, hp, tau = i // 4, (i // 2) % 2, i % 2
        a('s_add_u32 s31, s28, %d' % ((2 * q + hp) * 28 * 1024))
        a('buffer_load_dwordx4 %s, v%d, s[4:7], s31 offen offset:%d%s' % (vr(UU(q, tau) + 4 * hp, 4), VL, tau * 1024, '' if c.opts.get('uplain', 0) else ' sc1'))
    ldu(0); ldu(1)
    for r in range(4): a('v_mov_b64 %s, 0' % vr(60 + 2 * r, 2))
    a('s_waitcnt lgkmcnt(0)\ns_barrier')
    c.stamp(5)
    for k in range(7):
        a('ds_read_b128 %s, v%d offset:%d' % (vr(M(k), 4), VL, k * 1024))
    V7 = 112
    acc = lambda tt: V7 if tt == 7 else VA(tt % 3)
    def post(tt):
        hl, tau = tiles[tt]
        return [lambda h=h: cvt(a, VMR(tau) + 2 * hl + h, acc(tt) + 2 * h, acc(tt) + 2 * h + 1) for h in range(2)]
    def zer(x):
        return [lambda r=r: a('v_mov_b64 %s, 0' % vr(x + 2 * r, 2)) for r in range(2)]
    def ldw(k, h):
        return lambda: a('ds_read_b128 %s, v%d offset:%d' % (vr(ST[k % 2] + 4 * h, 4), VWL, k * 2048 + 1024 * h))
    seq = [(tt, k) for k in range(7) for tt in range(2)] + [(tt, k) for tt in range(2, 7) for k in range(7)]
    for k in range(7):
        seq.insert(15 + 6 * k, (7, k))
    fl = {}
    def put(pos, fs):
        for f in fs:
            while pos in fl: pos += 1
            fl[pos] = f
    pos7 = [seq.index((7, k)) for k in range(7)]
    put(8, [ldw(0, 0), ldw(0, 1), ldw(1, 0), ldw(1, 1)])
    put(12, zer(V7))
    for k in range(5): put(pos7[k], [ldw(k + 2, 0), ldw(k + 2, 1)])
    put(0, zer(VA(2)))
    for tt in range(6):
        last = max(i for i, x in enumerate(seq) if x[0] == tt)
        put(last + 2, post(tt) + (zer(acc(tt)) if tt < 4 else []))
    put(pos7[6] + 2, post(7))
    for i in range(2, 8): put(i, [lambda i=i: ldu(i)])
    uf = c.opts.get('uf', 1)
    if uf: put(8, [lambda: a('s_add_u32 s32, s24, %d\ns_min_u32 s32, s32, 63\ns_bitcmp1_b64 s[60:61], s32\ns_cbranch_scc1 B_nuf\nbuffer_load_dword v111, v%d, s[4:7], s35 offen sc1\nB_nuf:' % (uf, VFL))])
    nld = 0
    for j, (tt, k) in enumerate(seq):
        if tt == 0: a('s_waitcnt lgkmcnt(%d)' % (6 - k + nld))
        if tt < 7:
            smf(a, acc(tt), M(k), WREG(tt * 7 + k), IDX)
        else:
            a('s_waitcnt lgkmcnt(%d)' % (nld - 2 * (k + 1)))
            smf(a, V7, M(k), ST[k % 2], IDX)
        if j in fl:
            n0 = len(a.lines)
            fl[j]()
            nld += sum(1 for l in a.lines[n0:] if l.startswith('ds_read'))
    assert max(fl) < len(seq), max(fl)
    c.stamp(6)
    for f in zer(VA(1)) + zer(VA(2)): f()
    a('s_nop 5')
    for f in post(6): f()
    c.stamp(2)
    if c.opts.get('bgw', 0):
        a('s_waitcnt vmcnt(0)')
        c.stamp(7)
    pv = c.opts.get('ptest', 0)
    if pv:
        if pv & 1: a('buffer_load_dwordx4 v[8:11], v%d, s[4:7], s27 offen sc1' % VPM)
        if pv & 2: a('buffer_load_dwordx4 v[0:3], v%d, s[4:7], s27 offen sc1' % VL)
        if pv & 4: a('buffer_load_dwordx4 v[4:7], v%d, s[4:7], s27 offen offset:1024 sc1' % VL)
        a('s_waitcnt vmcnt(0)')
        c.stamp(7)
    c.poll('BpollP', ['buffer_load_dwordx4 v[8:11], v%d, s[4:7], s27 offen sc1' % VPM,
                      'buffer_load_dwordx4 v[0:3], v%d, s[4:7], s27 offen sc1' % VL,
                      'buffer_load_dwordx4 v[4:7], v%d, s[4:7], s27 offen offset:1024 sc1' % VL], list(range(12)), TMP, c.opts.get('db', 2))
    c.stamp(3)
    for tau in range(2):
        smf(a, VA(1 + tau), 8, VMR(tau), IDX)
        smf(a, VA(1 + tau), 0, UU(0, tau), IDX)
        smf(a, VA(1 + tau), 4, UU(1, tau), IDX)
    for tau in range(2):
        r = VA(1 + tau)
        if tau == 1: a('s_nop 2')
        a('v_permlane32_swap_b32 v%d, v%d\nv_permlane32_swap_b32 v%d, v%d' % (r, r + 1, r + 2, r + 3))
        a('v_add_f32 v%d, v%d, v%d\nv_add_f32 v%d, v%d, v%d' % (r, r, r + 1, r + 2, r + 2, r + 3))
        a('ds_write2_b32 v%d, v%d, v%d offset0:%d offset1:%d' % (VRW, r, r + 2, 16 * tau, 16 * tau + 72))
    a('s_add_u32 s26, s26, 7168')
    a('s_waitcnt lgkmcnt(0)\ns_barrier')
    for p in range(4):
        a('ds_read_b64 %s, v%d offset:%d' % (vr(12 + 2 * p, 2), VRR, p * 1152))
    a('s_waitcnt lgkmcnt(2)\nv_add_f32 v12, v12, v14\nv_add_f32 v13, v13, v15')
    a('s_waitcnt lgkmcnt(0)\nv_add_f32 v16, v16, v18\nv_add_f32 v17, v17, v19\nv_add_f32 v12, v12, v16\nv_add_f32 v13, v13, v17')
    cvt(a, 12, 12, 13)
    a('v_min_u32 v12, -2, v12')
    a('buffer_store_dword v12, v%d, s[4:7], s26 offen' % VMS)
    if uf: a('v_cmp_eq_u32 s[60:61], s33, v111')
    c.stamp(4)
    if c.opts.get('ackw', 0):
        a('s_waitcnt vmcnt(0)')
        c.stamp(7)
    if selfp:
        a('s_add_u32 s31, s26, 14336\ns_cmp_lt_u32 s24, 61\ns_cselect_b32 s31, s31, 0x%x\nv_mov_b32 v13, -1' % DUMMY)
        a('buffer_store_dword v13, v%d, s[4:7], s31 offen' % VMS)
    c.flush_stamps(8, 59, 14)
    a('s_add_u32 s24, s24, 1\ns_add_u32 s27, s27, 10240\ns_add_u32 s28, s28, 0x%x' % USEG)
    a('s_cmp_lt_u32 s24, 63\ns_cbranch_scc1 B_top')
    if c.opts.get('dl', 1):
        a('s_mov_b32 s26, 0x%x\nbuffer_store_dword v12, v%d, s[4:7], s26 offen sc1' % (MEMX + 63 * 7168, VMS))
    c.end()

def gen_relay(c):
    a = c.a
    a.label('R_role')
    if c.opts.get('fuse', 1):
        import fused as F
        a('s_cmp_ge_u32 s20, %d\ns_cbranch_scc1 M_exit' % c.opts.get('nr', 2))
        F.ln_wait(c, 'Ri', 4, 1, True)
    nr = c.opts.get('nr', 2); dl = c.opts.get('dl', 1)
    a('s_cmp_ge_u32 s20, %d\ns_cbranch_scc1 M_exit' % nr)
    a('v_lshlrev_b32 v2, 4, v1\ns_add_u32 s24, s20, 1\ns_mul_i32 s26, s24, 7168\ns_add_u32 s27, s26, 0x%x\ns_add_u32 s26, s26, 0x%x' % (MEMX, MEMC))
    a.label('R_top')
    a('s_add_u32 s28, s26, 4096\ns_add_u32 s29, s27, 4096')
    l = c.spin_head('Rp0')
    a('buffer_load_dword v3, off, s[4:7], s26 sc1\ns_waitcnt vmcnt(0)\nv_cmp_eq_u32 vcc, -1, v3\ns_cbranch_vccnz %s' % l)
    l = c.spin_head('Rpoll')
    for k in range(7):
        a('buffer_load_dwordx4 %s, v2, s[4:7], s%d offen offset:%d sc1' % (vr(4 + 4 * k, 4), 26 if k < 4 else 28, (k % 4) * 1024))
    a('s_waitcnt vmcnt(0)')
    c.check_poison(list(range(4, 32)), 3)
    a('s_cbranch_vccnz %s' % l)
    for k in range(7):
        a('buffer_store_dwordx4 %s, v2, s[4:7], s%d offen offset:%d sc1' % (vr(4 + 4 * k, 4), 27 if k < 4 else 29, (k % 4) * 1024))
    a('s_add_u32 s24, s24, %d\ns_add_u32 s26, s26, %d\ns_add_u32 s27, s27, %d' % (nr, 7168 * nr, 7168 * nr))
    a('s_waitcnt vmcnt(0)')
    a('s_cmp_lt_u32 s24, %d\ns_cbranch_scc1 R_top' % (64 - dl))
    c.end()

def gen_prefetch(c):
    a = c.a
    a.label('F_role')
    if c.opts.get('fuse', 1):
        import fused as F
        F.ln_wait1(c, 'Fi', 4, True)
    a('v_lshlrev_b32 v2, 4, v1\ns_lshl_b32 s27, s20, 13\ns_add_u32 s27, s27, 0x%x\ns_mov_b32 s24, 0\ns_mov_b32 s26, 0x%x' % (XK + 32768, MEMC))
    a('s_and_b32 s29, s20, 1\ns_lshl_b32 s29, s29, 13\nv_lshl_add_u32 v40, v1, 7, s29')
    a('s_movk_i32 s30, 7168\ns_mov_b32 s31, 0x%x\ns_cmp_lt_u32 s20, 2\ns_cselect_b32 s30, 10240, s30\ns_cselect_b32 s31, 0x%x, s31\ns_sub_u32 s29, s30, 128' % (MEMC + 7168, PC))
    a('v_min_u32 v40, s29, v40')
    a.label('F_top')
    a('buffer_load_dword v41, v40, s[4:7], s31 offen sc1\ns_add_u32 s31, s31, s30')
    a('s_add_u32 s28, s27, 4096')
    for k in range(8):
        a('buffer_load_dwordx4 %s, v2, s[4:7], s%d offen offset:%d' % (vr(4 + 4 * k, 4), 27 if k < 4 else 28, (k % 4) * 1024))
    l = c.spin_head('Fpoll')
    a('buffer_load_dword v3, off, s[4:7], s26 sc1\ns_waitcnt vmcnt(0)\nv_cmp_eq_u32 vcc, -1, v3\ns_cbranch_vccnz %s' % l)
    a('s_add_u32 s24, s24, 1\ns_add_u32 s26, s26, 7168\ns_add_u32 s27, s27, 32768')
    a('s_cmp_lt_u32 s24, 63\ns_cbranch_scc1 F_top')
    c.end()

from workers import gen_workers

def gen_main(a, opts):
    c = Ctx(a, opts)
    a.label('main_kernel')
    c.rt(0, False)
    a('s_load_dwordx2 s[36:37], s[0:1], 0')
    a('s_load_dwordx8 s[40:47], s[0:1], 64')
    a('s_load_dwordx2 s[48:49], s[0:1], 96')
    fuse = opts.get('fuse', 1)
    if fuse:
        import fused as F
        a('s_load_dwordx4 s[72:75], s[0:1], 0\ns_load_dwordx8 s[76:83], s[0:1], 16')
    a('v_lshrrev_b32 v2, 6, v0\nv_and_b32 v1, 63, v0\ns_nop 0\nv_readfirstlane_b32 s20, v2')
    a('s_getreg_b32 s21, hwreg(HW_REG_XCC_ID, 0, 4)')
    a('s_mov_b32 s23, 0x100000')
    a('s_waitcnt lgkmcnt(0)')
    srd(a, 4, 48, WS_BYTES)
    srd(a, 16, 46, 256)
    a('s_cmp_ge_u32 s21, 8\ns_cbranch_scc1 M_exit')
    if fuse: a('s_cmp_ge_u32 s2, 256\ns_cbranch_scc1 M_end')
    a('s_cmp_lg_u32 s20, 0\ns_cbranch_scc1 M_tk')
    tk = opts.get('tk', 0)
    if tk:
        a('s_lshl_b32 s22, s21, 8\ns_add_u32 s22, s22, 0x%x\nv_mov_b32 v255, 1\ns_mov_b64 exec, 1' % (FLG_M + 1024))
    else:
        a('s_lshl_b32 s22, s21, 4\nv_mov_b32 v255, 1\ns_mov_b64 exec, 1')
    a('buffer_atomic_add v255, off, %s, s22 sc0%s\ns_mov_b64 exec, -1' % ('s[4:7]' if tk else 's[16:19]', ' sc1' if tk == 2 else ''))
    a.label('M_tk')
    if fuse:
        a('s_and_b32 s65, s2, 7\ns_lshr_b32 s66, s2, 3\ns_cmp_lg_u32 s65, 0\ns_cbranch_scc1 J_role')
        F.gen_ln(c)
    else:
        a('s_waitcnt vmcnt(0)')
    a.label('M_roles')
    a('v_mov_b32 v3, 0\ns_cmp_lg_u32 s20, 0\ns_cbranch_scc1 M_t2\ns_mov_b64 exec, 1\nds_write_b32 v3, v255\ns_mov_b64 exec, -1')
    a.label('M_t2')
    a('s_waitcnt lgkmcnt(0)\ns_barrier\nds_read_b32 v2, v3\ns_waitcnt lgkmcnt(0)\nv_readfirstlane_b32 s22, v2\ns_barrier')
    a('s_mov_b32 s58, s22')
    if opts.get('perm', 0):
        a('s_lshl_b32 s26, s21, 2\ns_lshr_b32 s21, 0x%s, s26\ns_and_b32 s21, s21, 7' % opts['perm'])
    a('s_cmp_ge_u32 s22, 32\ns_cbranch_scc1 M_exit')
    if not fuse: c.rt(1, False)
    a('s_lshl_b32 s59, s21, 5\ns_add_u32 s59, s59, s22\ns_lshl_b32 s59, s59, 2\ns_add_u32 s59, s59, s20\ns_and_b32 s59, s59, 127')
    a('s_cmp_lg_u32 s21, 0\ns_cbranch_scc1 W_roles')
    a('s_cmp_eq_u32 s22, 30\ns_cbranch_scc1 R_role')
    a('s_cmp_eq_u32 s22, 31\ns_cbranch_scc1 %s' % ('F_role' if opts.get('pref', 1) else 'M_exit'))
    a('s_sub_u32 s25, s22, 16\ns_cmp_ge_u32 s22, 16\ns_cbranch_scc1 B_role')
    a('s_mov_b32 s25, s22')
    for w in range(1, 4):
        a('s_cmp_eq_u32 s20, %d\ns_cbranch_scc1 A_w%d' % (w, w))
    for w in range(4):
        gen_chainA(c, w)
    a.label('M_exit')
    if opts.get('rt', 0):
        c.rt(3)
        a('s_lshl_b32 s62, s21, 5\ns_add_u32 s62, s62, s58\ns_lshl_b32 s62, s62, 2\ns_add_u32 s62, s62, s20\ns_lshl_b32 s62, s62, 4\ns_add_u32 s62, s62, 0x%x' % (TS + 0x80000))
        a('v_mov_b32 v0, s90\nv_mov_b32 v1, s92\nv_mov_b32 v2, s94\nv_mov_b32 v3, s96\n' + ('s_and_b32 s2, s2, 7\nv_mov_b32 v2, s2\n' if opts.get('xid') else '') + 's_mov_b64 exec, 1\nbuffer_store_dwordx4 v[0:3], off, s[4:7], s62')
    if opts.get('dbgt', 0):
        a('s_cmp_lg_u32 s21, 0\ns_cbranch_scc1 D_1\ns_cmp_ge_u32 s58, 30\ns_cbranch_scc1 M_end')
        a('buffer_atomic_umax v0, off, s[16:19], 0 offset:4\nbuffer_atomic_umax v2, off, s[16:19], 0 offset:8\nbuffer_atomic_umax v3, off, s[16:19], 0 offset:12\ns_branch M_end')
        a.label('D_1')
        a('s_lshl_b32 s62, s21, 2\nv_not_b32 v0, v0\ns_cmp_ge_u32 s21, 6\ns_cbranch_scc1 D_2\ns_cmp_lg_u32 s21, 1\ns_cbranch_scc1 M_end')
        a('buffer_atomic_umax v0, off, s[16:19], 0 offset:36\ns_branch M_end')
        a.label('D_2')
        a('buffer_atomic_umax v3, off, s[16:19], s62')
    a.label('M_end')
    a('s_endpgm')
    gen_chainB(c)
    gen_relay(c)
    gen_prefetch(c)
    gen_workers(c)
    if fuse: F.gen_jobs(c)
```

```python
from asm import *
from layout import *
from prep import srd, f2u

LOG2E = 1.4426950408889634
ACC = lambda t, mt: 4 * (2 * t + mt)
XS = lambda b, mt: 56 + 8 * b + 4 * mt
VL, VX = 104, 105

def mfma(a, d, x, y, c=None):
    a('v_mfma_f32_16x16x32_bf16 %s, %s, %s, %s' % (R(d, 4), R(x, 4), R(y, 4), '0' if c is None else R(c, 4)))

def idx14(a, dst0, n, rowbytes):
    a('s_movk_i32 s27, 4682')
    for i in range(n):
        a('v_add_u32 v2, %d, v1' % (64 * i))
        a('v_mul_u32_u24 v3, s27, v2\nv_lshrrev_b32 v3, 16, v3')
        a('v_mul_u32_u24 v4, 14, v3\nv_sub_u32 v4, v2, v4')
        a('v_mul_u32_u24 v3, %d, v3\nv_lshl_add_u32 v%d, v4, 4, v3' % (rowbytes, dst0 + i))

def dma_x(a):
    a('s_mov_b32 m0, s28\ns_add_u32 s63, s27, 4096')
    for i in range(4):
        a('buffer_load_dwordx4 v%d, s[4:7], s27 offen offset:%d lds' % (VL, i * 1024))
    a('s_add_u32 m0, s28, 4096\ns_nop 0')
    for i in range(3):
        a('buffer_load_dwordx4 v%d, s[4:7], s63 offen offset:%d lds' % (VL, i * 1024))

def gemm_setup(a, flag0, sh=6):
    a('s_mul_i32 s27, s24, 28672\ns_mul_i32 s28, s20, 7168\ns_add_u32 s27, s27, s28\ns_add_u32 s27, s27, 0x%x' % XP)
    dma_x(a)
    a('v_mov_b32 v%d, v%d' % (VX, VL))
    a('s_lshl_b32 s30, s24, %d\ns_add_u32 s30, s30, s%d\ns_mov_b32 s31, 0x%x' % (sh, flag0, FLG_M))

def gemm_loop(c, name, step, wA, epilogue, done='M_exit', first=False):
    from mainker import WREG
    a = c.a
    def mm(fst):
        def rd(ks):
            for mt in range(2):
                a('ds_read_b128 %s, v%d offset:%d' % (vr(XS(ks % 2, mt), 4), VX, (mt * 14 + ks) * 1024))
        rd(0)
        for ks in range(14):
            if ks < 13: rd(ks + 1)
            a('s_waitcnt lgkmcnt(%d)' % (2 if ks < 13 else 0))
            if fst and ks % 2 == 0 and ks >= 6: a('s_waitcnt vmcnt(%d)' % (14 * (6 - ks // 2)))
            for t in range(7):
                for mt in range(2):
                    wr = WREG(t * 7 + ks // 2) + 4 * (ks % 2)
                    x = XS(ks % 2, mt)
                    mfma(a, ACC(t, mt), wr if wA else x, x if wA else wr, None if ks == 0 else ACC(t, mt))
    c.rt(2, not first)
    if first:
        a('s_add_u32 s27, s27, %d\ns_xor_b32 s28, s28, 32768\ns_barrier' % (28672 * step))
        mm(True)
        dma_x(a)
        a('s_branch %s_epi' % name)
    a.label(name + '_top')
    a('s_waitcnt vmcnt(0)\ns_barrier')
    a('s_cmp_lg_u32 s20, 0\ns_cbranch_scc1 %s_nf' % name)
    a('v_mov_b32 v56, 1\ns_mov_b64 exec, 1\nbuffer_store_%s v56, off, s[4:7], s31 sc1\ns_mov_b64 exec, -1' % ('byte' if name == 'RU' else 'dword'))
    a.label(name + '_nf')
    a('s_cmp_ge_u32 s24, 64\ns_cbranch_scc1 %s' % done)
    a('s_add_u32 s27, s27, %d\ns_xor_b32 s28, s28, 32768' % (28672 * step))
    a('s_cmp_ge_u32 s24, %d\ns_cbranch_scc1 %s_nd' % (64 - step, name))
    dma_x(a)
    a.label(name + '_nd')
    c.ws(0)
    mm(False)
    a.label(name + '_epi')
    a('v_xor_b32 v%d, 32768, v%d\ns_nop 6' % (VX, VX))
    epilogue()
    a('s_mov_b32 s31, s30\ns_add_u32 s30, s30, %d\ns_add_u32 s24, s24, %d' % ((16 if name == 'RU' else 64) * step, step))
    a('s_branch %s_top' % name)

def gen_RU(c):
    from mainker import WREG, load_weights, cvt
    a = c.a
    a.label('RU_role')
    a('s_lshr_b32 s25, s22, 2\ns_and_b32 s24, s22, 3')
    if c.opts.get('fuse', 1):
        import fused as F
        F.wait_all(c, 'Uw', 's_mov_b32 s26, s25', c.opts.get('mg', 0))
    a('s_add_u32 s33, s25, 0x%x' % FLG_U)
    a('s_mul_i32 s26, s25, 0x%x\ns_mul_i32 s29, s20, %d\ns_add_u32 s26, s26, s29\ns_add_u32 s26, s26, 0x%x' % (MAT, 49 * 2048, BFR))
    if c.opts.get('fuse', 1):
        if c.opts.get('xl', 1):
            F.ln_addr(a, 4, 1, True); F.ln_load(a, 4, True)
            def mid():
                a('s_waitcnt vmcnt(40)')
                F.ln_check(c, 'Ul', 4, 1, True)
                gemm_setup(a, 33, 4)
        else:
            mid = None
            if not c.opts.get('mg', 0): F.ln_wait1(c, 'Ul', 4, True)
            gemm_setup(a, 33, 4)
        load_weights(a, [(WREG(t * 7 + k), (t * 7 + k) * 2048) for k in range(7) for t in range(7)], 26, VL, mid)
    else:
        gemm_setup(a, 33)
        load_weights(a, [(WREG(b), b * 2048) for b in range(49)], 26, VL)
    a('s_mul_i32 s29, s24, 0x%x\ns_mul_i32 s32, s25, 28672\ns_add_u32 s29, s29, s32\ns_mul_i32 s32, s20, 7168\ns_add_u32 s29, s29, s32\ns_add_u32 s29, s29, 0x%x' % (USEG, UB))
    from mainker import smf, OOB
    M = lambda k: 28 + 4 * k
    IDX, VA0, VA1, TMP = 106, 107, 108, 109
    lead = c.opts.get('lead', 16)
    a('v_bfe_u32 v3, v1, 3, 1\nv_mov_b32 v4, 0x4444\nv_mov_b32 v5, 0xeeee\nv_cmp_eq_u32 vcc, 1, v3\ns_nop 1\nv_cndmask_b32 v%d, v4, v5, vcc' % IDX)
    a('s_and_b32 s32, s25, 1\ns_lshl_b32 s32, s32, 9\ns_bfe_u32 s33, s25, 0x10001\ns_lshl_b32 s33, s33, 3\ns_add_u32 s32, s32, s33')
    a('v_and_b32 v2, 31, v1\nv_lshl_add_u32 v2, v2, 4, s32\nv_add_u32 v3, 1024, v2\nv_mov_b32 v4, 0x%x\nv_cmp_gt_u32 vcc, 32, v1' % OOB)
    a('s_nop 1\nv_cndmask_b32 v%d, v3, v2, vcc\nv_cndmask_b32 v%d, v4, v2, vcc' % (VA0, VA1))
    a('s_mov_b32 s52, s24')
    a('s_mul_i32 s50, s24, 7168\ns_add_u32 s50, s50, 0x%x' % MEMX)
    a('s_mul_i32 s53, s24, 0x%x\ns_lshr_b32 s32, s25, 2\ns_mul_i32 s32, s32, 28672\ns_add_u32 s53, s53, s32\ns_mul_i32 s32, s20, 7168\ns_add_u32 s53, s53, s32\ns_add_u32 s53, s53, 0x%x' % (VMSEG, VM))
    a('s_lshl_b32 s55, s24, 6\ns_lshl_b32 s32, s25, 2\ns_add_u32 s55, s55, s32\ns_add_u32 s55, s55, 0x%x' % FLG_V)
    def vpart():
        for r in range(28): a('v_mov_b32 v%d, 0' % r)
        a('s_add_u32 s51, s50, 4096\ns_add_u32 s54, s53, 4096')
        c.ws(0)
        c.gate(lambda: c.probe('RVm0', 50, TMP), 0, c.opts.get('g1', 1))
        c.poll('RVm1', ['buffer_load_dwordx4 %s, v%d, s[4:7], s%d offen offset:%d sc1' % (vr(M(k), 4), VL, 50 + k // 4, (k % 4) * 1024) for k in range(7)],
               list(range(M(0), M(7))), TMP, 1)
        c.ws(1)
        def post(pr):
            x, y, o = 8 * pr, 8 * pr + 4, 56 + 2 * pr
            if pr == 3:
                y = 64
                for r in range(4): a('v_mov_b32 v%d, v%d' % (y + r, x + r))
                a('s_nop 0')
            for r in range(4): a('v_permlane32_swap_b32 v%d, v%d' % (x + r, y + r))
            for r in range(4): a('v_add_f32 v%d, v%d, v%d' % (x + r, x + r, y + r))
            cvt(a, o, x, x + 1); cvt(a, o + 1, x + 2, x + 3)
            a('v_min_u32 v%d, -2, v%d\nv_min_u32 v%d, -2, v%d' % (o, o, o + 1, o + 1))
            a('buffer_store_dwordx2 %s, v%d, s[4:7], s%d offen offset:%d sc1' % (vr(o, 2), VA1 if pr == 3 else VA0, 53 if pr < 2 else 54, (pr % 2) * 2048))
        for t in range(7):
            for k in range(7):
                smf(a, 4 * t, M(k), WREG(t * 7 + k), IDX)
                if k == 2 and t in (2, 4, 6): post(t // 2 - 1)
        a('s_nop 7')
        post(3)
        c.ws(2)
        nf = a.newlabel('RVnf')
        a('s_waitcnt vmcnt(0)\ns_barrier')
        a('s_cmp_lg_u32 s20, 0\ns_cbranch_scc1 %s' % nf)
        a('s_mov_b64 exec, 1\nbuffer_store_dword v%d, off, s[4:7], s55 sc1\ns_mov_b64 exec, -1' % IDX)
        a.label(nf)
        c.ws(3); c.wflush(1, 25, 64, 52)
        a('s_add_u32 s50, s50, %d\ns_add_u32 s53, s53, 0x%x\ns_add_u32 s55, s55, 256\ns_add_u32 s52, s52, 4' % (4 * 7168, 4 * VMSEG))
    def epi():
        a('s_add_u32 s32, s29, 4096')
        for t in range(7):
            o = 72 + 4 * t
            for q in range(4):
                s = ACC(t, q // 2) + 2 * (q % 2)
                cvt(a, o + q, s, s + 1)
            a('buffer_store_dwordx4 %s, v%d, s[4:7], s%d offen offset:%d sc1' % (vr(o, 4), VL, 29 if t < 4 else 32, (t % 4) * 1024))
        a('s_add_u32 s29, s29, 0x%x' % (4 * USEG))
        c.ws(3); c.wflush(3, 25, 56)
        if c.opts.get('fuse', 1):
            a('s_sub_u32 s32, s24, 4\ns_cmp_ge_u32 s32, 4\ns_cbranch_scc1 RU_nl\nv_lshrrev_b32 v8, 4, v%d' % VL)
            F.ln_wait(c, 'Uf', 4, 8)
            a.label('RU_nl')
        if lead < 16 and not c.opts.get('bare', 0):
            a('s_cmp_lt_u32 s24, %d\ns_cbranch_scc1 RU_nv' % (4 * lead))
            vpart()
            a.label('RU_nv')
    gemm_loop(c, 'RU', 4, False, epi, 'RV_role', c.opts.get('fuse', 1))
    a.label('RV_role')
    if c.opts.get('bare', 0): a('s_branch M_exit')
    a.label('RV_top')
    vpart()
    a('s_cmp_lt_u32 s52, 64\ns_cbranch_scc1 RV_top')
    c.end()

def gen_RH(c):
    from mainker import WREG, cvt
    a = c.a
    a.label('RH_role')
    if c.opts.get('bare', 0): a('s_branch M_exit')
    a('s_sub_u32 s22, s22, 128\ns_lshr_b32 s25, s22, 3\ns_and_b32 s24, s22, 7')
    srd(a, 8, 40, 448 * 1792 * 2)
    idx14(a, 6, 14, 3584)
    a('s_mul_i32 s26, s25, 896\ns_mul_i32 s27, s20, 224\ns_add_u32 s26, s26, s27')
    a('s_mul_i32 s35, s20, 28672')
    a('v_lshrrev_b32 v2, 4, v1\nv_bfe_u32 v3, v1, 2, 1\nv_lshl_add_u32 v2, v2, 2, v3\nv_bfe_u32 v3, v1, 3, 1\nv_lshl_add_u32 v2, v3, 5, v2')
    a('v_mul_u32_u24 v2, 224, v2\nv_and_b32 v3, 3, v1\nv_lshl_add_u32 v2, v3, 3, v2\nv_add_u32 v5, s35, v2')
    def ld(kk):
        for i in range(14):
            a('s_add_u32 m0, s35, %d\ns_nop 0' % ((kk % 2) * 14336 + i * 1024))
            a('buffer_load_dwordx4 v%d, s[8:11], s26 offen lds' % (6 + i))
        a('s_add_u32 s26, s26, %d' % (64 * 3584))
    ld(0); ld(1)
    for kk in range(7):
        a('s_waitcnt vmcnt(%d)' % (14 if kk < 6 else 0))
        for t in range(7):
            for q in range(4):
                a('ds_read_b64_tr_b16 %s, v5 offset:%d' % (R(WREG(t * 7 + kk) + 2 * q, 2), (kk % 2) * 14336 + (16 * (q // 2) + 2 * (q % 2)) * 224 + 32 * t))
            if t % 2 == 1: a('s_waitcnt lgkmcnt(4)')
        a('s_waitcnt lgkmcnt(0)')
        if kk + 2 < 7: ld(kk + 2)
    a('s_barrier')
    if c.opts.get('fuse', 1):
        import fused as F
        F.ln_wait1(c, 'Hi', 2)
    a('s_lshl_b32 s26, s25, 2\ns_add_u32 s26, s26, 0x%x' % FLG_H)
    gemm_setup(a, 26)
    a('s_mul_i32 s29, s24, 0x%x\ns_mul_i32 s32, s25, 28672\ns_add_u32 s29, s29, s32\ns_add_u32 s29, s29, 0x%x' % (HSEG, HB))
    a('s_mul_i32 s33, s20, 3072')
    a('s_lshr_b32 s34, s20, 1\ns_lshl_b32 s34, s34, 10\ns_and_b32 s32, s20, 1\ns_lshl_b32 s32, s32, 3\ns_add_u32 s34, s34, s32\ns_add_u32 s34, s34, 12288')
    a('s_mov_b32 s35, 0x%x' % f2u(-LOG2E))
    def epi():
        for mt in range(2):
            a('s_add_u32 s32, s29, s33\ns_add_u32 s26, s29, s34')
            for t in range(7):
                s = ACC(t, mt); tm = 56 + 4 * (t % 2)
                for r in range(4): a('v_mul_f32 v%d, s35, v%d' % (tm + r, s + r))
                for r in range(4): a('v_exp_f32 v%d, v%d' % (tm + r, tm + r))
                for r in range(4): a('v_add_f32 v%d, 1.0, v%d' % (tm + r, tm + r))
                for r in range(4): a('v_rcp_f32 v%d, v%d' % (tm + r, tm + r))
                for r in range(4): a('v_mul_f32 v%d, v%d, v%d' % (s + r, s + r, tm + r))
                o = 72 + 16 * mt + 2 * t
                cvt(a, o, s, s + 1); cvt(a, o + 1, s + 2, s + 3)
                if t % 2 == 1:
                    a('buffer_store_dwordx4 %s, v%d, s[4:7], s32 offen offset:%d sc1' % (vr(o - 2, 4), VL, (t // 2) * 1024))
                elif t == 6:
                    a('buffer_store_dwordx2 %s, v%d, s[4:7], s26 offen sc1' % (vr(o, 2), VL))
            a('s_add_u32 s29, s29, 0x%x' % (14336 if mt == 0 else 8 * HSEG - 14336))
    gemm_loop(c, 'RH', 8, True, epi)

def gen_RT(c):
    from mainker import WREG, load_weights, cvt, NEGBIG, OOB
    a = c.a
    VKX, VKM, VPM, VNG, VSB, TMP = 106, 109, 112, 113, 114, 115
    TP = lambda mt, sg: 72 + 16 * mt + 4 * sg
    KX = lambda tau, sg: 16 * tau + 4 * sg
    KM = lambda sg: 32 + 4 * sg
    SA = lambda tile, mt: 48 + 8 * tile + 4 * mt
    SB = 65536
    a.label('RT_role')
    if c.opts.get('bare', 0): a('s_branch M_exit')
    a('s_sub_u32 s22, s22, 64\ns_lshr_b32 s25, s22, 2\ns_and_b32 s24, s22, 3')
    if c.opts.get('fuse', 1):
        import fused as F
        F.wait_all(c, 'Tw', 's_add_u32 s26, s25, 16')
    a('s_lshl_b32 s33, s25, 2\ns_add_u32 s33, s33, 0x%x' % FLG_P)
    a('s_mul_i32 s26, s25, 0x%x\ns_mul_i32 s29, s20, %d\ns_add_u32 s26, s26, s29\ns_add_u32 s26, s26, 0x%x' % (MAT, 49 * 2048, AFR))
    if c.opts.get('fuse', 1):
        F.ln_addr(a, 4, 1)
        load_weights(a, [(WREG(b), b * 2048) for b in range(45)], 26, VL, lambda: F.ln_load(a, 4))
        F.ln_check(c, 'Tl', 4, 1)
        gemm_setup(a, 33)
        load_weights(a, [(WREG(b), b * 2048) for b in range(45, 49)], 26, VL)
    else:
        gemm_setup(a, 33)
        load_weights(a, [(WREG(b), b * 2048) for b in range(49)], 26, VL)
    a('v_and_b32 v2, 15, v1\nv_lshrrev_b32 v3, 4, v1\nv_and_b32 v4, 7, v1')
    a('v_lshrrev_b32 v5, 1, v3\nv_and_b32 v6, 1, v3\nv_lshlrev_b32 v6, 9, v6\nv_lshl_add_u32 v6, v5, 10, v6\nv_lshl_add_u32 v%d, v2, 4, v6' % VKX)
    a('s_lshr_b32 s33, s20, 1')
    a('v_lshlrev_b32 v5, 4, v4\nv_and_b32 v6, 1, v3\nv_lshl_add_u32 v6, v6, 9, v5\nv_lshrrev_b32 v7, 1, v3\nv_lshl_add_u32 v6, v7, 7, v6')
    a('s_lshl_b32 s32, s20, 10\nv_add_u32 v%d, s32, v6' % VKM)
    a('v_lshl_add_u32 v5, v3, 8, v5')
    a('s_and_b32 s34, s20, 1\ns_lshl_b32 s32, s33, 10\ns_lshl_b32 s35, s34, 7\ns_add_u32 s32, s32, s35\ns_add_u32 s32, s32, 4096\nv_add_u32 v%d, s32, v5' % (VKM + 1))
    a('s_lshl_b32 s32, s33, 7\ns_add_u32 s32, s32, 6144\nv_add_u32 v%d, s32, v5' % (VKM + 2))
    a('s_sub_u32 s50, s34, 1\ns_not_b32 s51, s50')
    a('s_lshl_b32 s32, s20, 4\nv_lshlrev_b32 v5, 2, v3\nv_sub_u32 v5, v2, v5\nv_add_u32 v%d, s32, v5' % VNG)
    a('s_lshr_b32 s32, s25, 2\ns_lshl_b32 s32, s32, 1\ns_add_u32 s32, s32, s20\ns_lshl_b32 s32, s32, 10\ns_add_u32 s32, s32, 32768')
    a('s_and_b32 s33, s25, 1\ns_lshl_b32 s33, s33, 9\ns_add_u32 s32, s32, s33\ns_bfe_u32 s33, s25, 0x10001\ns_lshl_b32 s33, s33, 3\ns_add_u32 s32, s32, s33')
    a('v_add_u32 v5, s32, v%d\nv_mov_b32 v6, 0x%x\nv_cmp_gt_u32 s[52:53], 32, v1\ns_nop 1\nv_cndmask_b32 v%d, v6, v5, s[52:53]' % (VL, OOB, VPM))
    a('s_mul_i32 s32, s20, 6144\ns_add_u32 s32, s32, %d\nv_add_u32 v%d, s32, v%d' % (SB, VSB, VL))
    a('s_lshl_b32 s32, s20, 10\ns_add_u32 s32, s32, %d\nv_add_u32 v116, s32, v%d' % (SB, VL))
    VSR = 116
    a('s_lshl_b32 s29, s24, 15\ns_lshl_b32 s32, s20, 13\ns_add_u32 s29, s29, s32\ns_add_u32 s29, s29, 0x%x' % XK)
    a('s_mul_i32 s33, s24, 7168\ns_add_u32 s33, s33, 0x%x' % MEMX)
    a('s_mul_i32 s34, s24, 40960\ns_add_u32 s34, s34, 0x%x' % PX)
    a('s_lshl_b32 s54, s25, 1\ns_add_u32 s54, s54, s20\ns_lshl_b32 s54, s54, 10')
    a('s_mov_b32 s55, 0x%x' % NEGBIG)
    def epi():
        for mt in range(2):
            for sg in range(3):
                for q in range(4):
                    s = ACC(2 * sg + q % 2, mt) + 2 * (q // 2)
                    cvt(a, TP(mt, sg) + q, s, s + 1)
            for hf in range(2):
                s = ACC(6, mt) + 2 * hf; o = TP(mt, 3) + 2 * hf
                cvt(a, o, s, s + 1)
                a('v_and_b32 v%d, s51, v%d\nv_and_b32 v%d, s50, v%d' % (o + 1, o, o, o))
        a('s_add_u32 s32, s29, 4096')
        for tau in range(2):
            for sg in range(4):
                a('buffer_load_dwordx4 %s, v%d, s[4:7], s%d offen offset:%d' % (vr(KX(tau, sg), 4), VKX, 32 if sg >= 2 else 29, tau * 2048 + (sg % 2) * 256))
        for tau in range(2):
            for sg in range(4):
                a('s_waitcnt vmcnt(%d)' % (7 - 4 * tau - sg))
                for mt in range(2):
                    if tau <= mt:
                        mfma(a, SA(tau, mt), KX(tau, sg), TP(mt, sg), None if sg == 0 else SA(tau, mt))
        a('s_nop 4')
        for (tau, mt) in ((0, 0), (0, 1), (1, 1)):
            if tau == 1: a('s_nop 2')
            a('ds_write_b128 v%d, %s offset:%d' % (VSB, vr(SA(tau, mt), 4), (tau * 2 + mt) * 1024))
        a('s_waitcnt lgkmcnt(0)\ns_barrier')
        a('s_cmp_ge_u32 s20, 2\ns_cbranch_scc1 RT_p1')
        for tau in range(2):
            for p in range(4):
                a('ds_read_b128 %s, v%d offset:%d' % (vr(16 * tau + 4 * p, 4), VSR, p * 6144 + tau * 2048))
        for tau in range(2):
            a('s_waitcnt lgkmcnt(%d)' % (4 - 4 * tau))
            for r in range(4):
                b = 16 * tau + r
                a('v_add_f32 v%d, v%d, v%d\nv_add_f32 v%d, v%d, v%d\nv_add_f32 v%d, v%d, v%d' % (b, b, b + 4, b + 8, b + 8, b + 12, b, b, b + 8))
                a('v_cmp_le_i32 vcc, %d, v%d\nv_mov_b32 v%d, s55\ns_nop 0\nv_cndmask_b32 v%d, v%d, v%d, vcc' % (16 * tau + r, VNG, b + 4, 8 * tau + r, b + 4, b))
        a('v_max3_f32 v4, v0, v1, v2\nv_max3_f32 v4, v4, v3, v8\nv_max3_f32 v4, v4, v9, v10\nv_max_f32 v4, v4, v11')
        a.label('RT_p1')
        c.ws(1)
        c.gate(lambda: c.probe('RTm0', 33, TMP), 2, c.opts.get('g1', 1))
        l = c.spin_head('RTm1')
        for sg in range(4):
            a('buffer_load_dwordx4 %s, v%d, s[4:7], s33 offen offset:%d sc1' % (vr(KM(sg), 4), VKM + max(0, sg - 1), 256 if sg == 1 else 0))
        a('s_waitcnt vmcnt(0)')
        c.check_poison(list(range(KM(0), KM(0) + 16)), TMP)
        a('s_cbranch_vccnz %s' % l)
        c.ws(2)
        for sg in range(4):
            for mt in range(2):
                mfma(a, SA(2, mt), KM(sg), TP(mt, sg), None if sg == 0 else SA(2, mt))
        a('s_nop 4')
        a('ds_write_b128 v%d, %s offset:4096\ns_nop 2\nds_write_b128 v%d, %s offset:5120' % (VSB, vr(SA(2, 0), 4), VSB, vr(SA(2, 1), 4)))
        a('s_waitcnt lgkmcnt(0)\ns_barrier')
        a('s_cmp_ge_u32 s20, 2\ns_cbranch_scc1 RT_p2')
        for p in range(4):
            a('ds_read_b128 %s, v%d offset:%d' % (vr(16 + 4 * p, 4), VSR, p * 6144 + 4096))
        a('v_mov_b32 v5, 0xff800000\ns_waitcnt lgkmcnt(0)')
        for r in range(4):
            b = 16 + r
            a('v_add_f32 v%d, v%d, v%d\nv_add_f32 v%d, v%d, v%d\nv_add_f32 v%d, v%d, v%d' % (b, b, b + 4, b + 8, b + 8, b + 12, b, b, b + 8))
            a('v_cndmask_b32 v%d, v5, v%d, s[52:53]' % (12 + r, b))
        a('v_max3_f32 v4, v4, v12, v13\nv_max3_f32 v4, v4, v14, v15')
        def allg(op, r, tmp):
            for sw in ('16', '32'):
                a('v_mov_b32 v%d, v%d\ns_nop 1\nv_permlane%s_swap_b32 v%d, v%d\n%s v%d, v%d, v%d' % (tmp, r, sw, tmp, r, op, r, r, tmp))
        allg('v_max_f32', 4, 5)
        regs = [0, 1, 2, 3, 8, 9, 10, 11, 12, 13, 14, 15]
        for r in regs: a('v_sub_f32 v%d, v%d, v4' % (r, r))
        for r in regs: a('v_exp_f32 v%d, v%d' % (r, r))
        a('v_add_f32 v4, v0, v1\nv_add_f32 v5, v2, v3\nv_add_f32 v6, v8, v9\nv_add_f32 v7, v10, v11\nv_add_f32 v16, v12, v13\nv_add_f32 v17, v14, v15')
        a('v_add_f32 v4, v4, v5\nv_add_f32 v6, v6, v7\nv_add_f32 v16, v16, v17\nv_add_f32 v4, v4, v6\nv_add_f32 v4, v4, v16')
        allg('v_add_f32', 4, 5)
        a('v_rcp_f32 v4, v4\ns_add_u32 s32, s34, s54')
        for r in regs: a('v_mul_f32 v%d, v%d, v4' % (r, r))
        for i in range(6): cvt(a, 16 + i, regs[2 * i], regs[2 * i + 1])
        for i in range(6): a('v_min_u32 v%d, -2, v%d' % (16 + i, 16 + i))
        a('buffer_store_dwordx4 v[16:19], v%d, s[4:7], s32 offen sc1' % VL)
        a('buffer_store_dwordx2 v[20:21], v%d, s[4:7], s34 offen sc1' % VPM)
        c.ws(3); c.wflush(2, 25, 24)
        a.label('RT_p2')
        a('s_add_u32 s29, s29, %d\ns_add_u32 s33, s33, %d\ns_add_u32 s34, s34, %d' % (4 * 32768, 4 * 7168, 4 * PXSEG))
    gemm_loop(c, 'RT', 4, True, epi)

def gen_W3(c):
    from mainker import cvt
    a = c.a
    D = lambda ct, mt: 4 * (2 * ct + mt)
    HF = lambda ks, mt: 32 + 4 * (2 * ks + mt)
    UF = lambda hh, ct: 144 + 4 * (4 * hh + ct)
    PF = lambda hh, mt: 208 + 4 * (2 * hh + mt)
    VMF = lambda ct: 32 + 4 * ct
    PMF = lambda mt: 48 + 4 * mt
    XR, L16, VO, VRW, VRR, TMP = 240, 244, 245, 246, 247, 248
    W2 = lambda ks, ct: 256 + 4 * (4 * ks + ct)
    a.label('W3_role')
    a('s_sub_u32 s22, s22, 160\ns_cmp_ge_u32 s22, %d\ns_cbranch_scc1 M_exit' % (0 if c.opts.get('novm', 0) or c.opts.get('now3', 0) or c.opts.get('bare', 0) else 63))
    a('s_mul_i32 s24, s22, 37\ns_lshr_b32 s24, s24, 8\ns_mul_i32 s25, s24, 7\ns_sub_u32 s25, s22, s25')
    srd(a, 8, 42, 448 * 1792 * 2)
    srd(a, 12, 44, XSZ)
    srd(a, 52, 36, XSZ)
    a('v_lshlrev_b32 v%d, 4, v1' % L16)
    a('v_lshrrev_b32 v2, 3, v1\nv_mul_u32_u24 v2, 0x380, v2\nv_and_b32 v3, 7, v1\nv_lshl_add_u32 v6, v3, 4, v2')
    a('s_mul_i32 s26, s20, %d\ns_lshl_b32 s27, s25, 7\ns_add_u32 s26, s26, s27' % (448 * 896))
    a('s_mul_i32 s35, s20, 28672')
    a('v_lshrrev_b32 v2, 2, v1\nv_lshlrev_b32 v2, 7, v2\nv_and_b32 v3, 3, v1\nv_lshl_add_u32 v2, v3, 3, v2\nv_add_u32 v5, s35, v2')
    def ld(ch):
        for i in range(14):
            a('s_add_u32 m0, s35, %d\ns_nop 0' % ((ch % 2) * 14336 + i * 1024))
            a('buffer_load_dwordx4 v6, s[8:11], s26 offen lds')
            a('s_add_u32 s26, s26, %d' % (8 * 896))
    ld(0); ld(1)
    for ch in range(4):
        a('s_waitcnt vmcnt(%d)' % (14 if ch < 3 else 0))
        for tt in range(7):
            for ct in range(4):
                dst = W2(3 * ch + tt // 2, ct) + 2 * (tt % 2) if tt < 6 else W2(12 + ch // 2, ct) + 2 * (ch % 2)
                a('ds_read_b64_tr_b16 %s, v5 offset:%d' % (R(dst, 2), (ch % 2) * 14336 + 16 * tt * 128 + 32 * ct))
            if tt % 2 == 1: a('s_waitcnt lgkmcnt(4)')
        a('s_waitcnt lgkmcnt(0)')
        if ch + 2 < 4: ld(ch + 2)
    a('s_barrier')
    a('v_and_b32 v2, 15, v1\nv_lshrrev_b32 v3, 4, v1\nv_mul_u32_u24 v2, 0x380, v2\nv_lshl_add_u32 v2, v3, 3, v2')
    a('s_lshl_b32 s26, s25, 7\ns_lshl_b32 s27, s20, 5\ns_add_u32 s26, s26, s27\nv_add_u32 v%d, s26, v2' % VO)
    a('s_lshl_b32 s26, s20, 13\nv_add_u32 v%d, s26, v%d\ns_lshl_b32 s26, s20, 11\nv_add_u32 v%d, s26, v%d' % (VRW, L16, VRR, L16))
    if c.opts.get('fuse', 1):
        import fused as F
        F.ln_wait1(c, 'Wi', 4, True)
    c.rt(2)
    a.label('W3_top')
    a('s_lshl_b32 s32, s24, 6\ns_lshl_b32 s33, s20, 2\ns_add_u32 s26, s32, s33\ns_add_u32 s26, s26, 0x%x' % FLG_H)
    a('s_lshl_b32 s33, s20, 4\ns_add_u32 s27, s32, s33\ns_add_u32 s28, s27, 0x%x\ns_add_u32 s29, s27, 0x%x' % (FLG_P, FLG_V))
    a('s_lshl_b32 s27, s24, 2\ns_add_u32 s27, s27, s20\ns_lshl_b32 s27, s27, 2\ns_add_u32 s27, s27, 0x%x' % FLG_U)
    a('s_mul_i32 s30, s24, 0x%x\ns_mul_i32 s33, s20, 28672\ns_add_u32 s30, s30, s33\ns_add_u32 s30, s30, 0x%x' % (HSEG, HB))
    a('s_mul_i32 s31, s24, 0x%x\ns_mul_i32 s33, s20, %d\ns_add_u32 s31, s31, s33\ns_lshl_b32 s33, s25, 12\ns_add_u32 s31, s31, s33\ns_add_u32 s31, s31, 0x%x' % (USEG, 4 * 28672, UB))
    a('s_mul_i32 s34, s24, 28672\ns_add_u32 s35, s34, 14336')
    c.ws(0)
    if c.opts.get('g2', 1): c.gate(lambda: c.wait_flags('W3f', 26, 1, TMP))
    c.wait_flags('W3h', 26, 1, TMP)
    l = c.spin_head('W3u')
    a('buffer_load_dword v%d, off, s[4:7], s27 sc1\ns_waitcnt vmcnt(0)\nv_cmp_ne_u32 vcc, 0x1010101, v%d\ns_cbranch_vccnz %s' % (TMP, TMP, l))
    for ks in range(14):
        for mt in range(2):
            a('s_add_u32 s63, s30, %d' % ((mt * 14 + ks) * 1024))
            a('buffer_load_dwordx4 %s, v%d, s[4:7], s63 offen sc1' % (vr(HF(ks, mt), 4), L16))
    for hh in range(4):
        for ct in range(4):
            a('buffer_load_dwordx4 %s, v%d, s[4:7], s31 offen offset:%d sc1' % (vr(UF(hh, ct), 4), L16, ct * 1024))
        a('s_add_u32 s31, s31, 28672')
    for mt in range(2):
        a('buffer_load_dwordx2 %s, v%d, s[52:55], s%d offen' % (vr(XR + 2 * mt, 2), VO, 34 + mt))
    for ks in range(14):
        a('s_waitcnt vmcnt(%d)' % (44 - 2 * ks))
        for ct in range(4):
            for mt in range(2):
                mfma(a, D(ct, mt), W2(ks, ct), HF(ks, mt), None if ks == 0 else D(ct, mt))
    a('s_mul_i32 s30, s24, %d\ns_lshl_b32 s33, s20, 13\ns_add_u32 s31, s30, s33\ns_add_u32 s31, s31, 0x%x' % (PXSEG, PX))
    a('s_lshl_b32 s33, s20, 11\ns_add_u32 s30, s30, s33\ns_add_u32 s30, s30, 0x%x' % (PX + 32768))
    a('s_mul_i32 s32, s24, 0x%x\ns_mul_i32 s33, s20, 28672\ns_add_u32 s32, s32, s33\ns_lshl_b32 s33, s25, 12\ns_add_u32 s32, s32, s33\ns_add_u32 s32, s32, 0x%x' % (VMSEG, VM))
    a('s_add_u32 s63, s31, 4096')
    c.ws(1)
    pl = c.opts.get('pl', 1) and c.opts.get('fuse', 1)
    if pl: a('s_cmp_eq_u32 s24, 63\ns_cbranch_scc1 W3_last')
    if c.opts.get('g2', 1): c.gate(lambda: c.wait_flags('W3g', 29, 4, TMP))
    l = c.spin_head('W3pv')
    a('buffer_load_dwordx4 %s, off, s[4:7], s28 sc1\nbuffer_load_dwordx4 %s, off, s[4:7], s29 sc1\ns_waitcnt vmcnt(0)' % (vr(TMP, 4), vr(TMP + 4, 4)))
    for i in range(3): a('v_min3_u32 v%d, v%d, v%d, v%d' % (TMP, TMP, TMP + 1 + 2 * i, TMP + 2 + 2 * i))
    a('v_min_u32 v%d, v%d, v%d' % (TMP, TMP, TMP + 7))
    a('v_cmp_eq_u32 vcc, 0, v%d\ns_cbranch_vccnz %s' % (TMP, l))
    c.ws(2)
    def ldpv():
        for hh in range(4):
            for mt in range(2):
                a('buffer_load_dwordx4 %s, v%d, s[4:7], s%d offen offset:%d sc1' % (vr(PF(hh, mt), 4), L16, 31 if hh < 2 else 63, ((hh % 2) * 2 + mt) * 1024))
        for mt in range(2):
            a('buffer_load_dwordx4 %s, v%d, s[4:7], s30 offen offset:%d sc1' % (vr(PMF(mt), 4), L16, mt * 1024))
        for ct in range(4):
            a('buffer_load_dwordx4 %s, v%d, s[4:7], s%d offen offset:%d sc1' % (vr(VMF(ct), 4), L16, 32, ct * 1024))
    ldpv()
    a.label('W3_go')
    for hh in range(4):
        a('s_waitcnt vmcnt(%d)' % (12 - 2 * hh))
        for ct in range(4):
            for mt in range(2):
                mfma(a, D(ct, mt), UF(hh, ct), PF(hh, mt), D(ct, mt))
    for ct in range(4):
        a('s_waitcnt vmcnt(%d)' % (3 - ct))
        for mt in range(2):
            mfma(a, D(ct, mt), VMF(ct), PMF(mt), D(ct, mt))
    a('s_barrier')
    for ct in range(4):
        for mt in range(2):
            if ct == 3: a('s_nop 1')
            a('ds_write_b128 v%d, %s offset:%d' % (VRW, vr(D(ct, mt), 4), (2 * ct + mt) * 1024))
    a('s_waitcnt lgkmcnt(0)\ns_barrier')
    for mt in range(2):
        for p in range(4):
            a('ds_read_b128 %s, v%d offset:%d' % (vr(16 * mt + 4 * p, 4), VRR, p * 8192 + mt * 1024))
    for mt in range(2):
        b = 16 * mt
        for q in range(2):
            a('v_lshlrev_b32 v%d, 16, v%d\nv_and_b32 v%d, 0xffff0000, v%d' % (32 + 2 * q, XR + 2 * mt + q, 33 + 2 * q, XR + 2 * mt + q))
        a('s_waitcnt lgkmcnt(%d)' % (4 - 4 * mt))
        for r in range(4):
            a('v_add_f32 v%d, v%d, v%d\nv_add_f32 v%d, v%d, v%d\nv_add_f32 v%d, v%d, v%d\nv_add_f32 v%d, v%d, v%d' % (
                b + r, b + r, b + 4 + r, b + 8 + r, b + 8 + r, b + 12 + r, b + r, b + r, 32 + r, b + r, b + r, b + 8 + r))
        cvt(a, 36 + 2 * mt, b, b + 1); cvt(a, 37 + 2 * mt, b + 2, b + 3)
        a('buffer_store_dwordx2 %s, v%d, s[12:15], s%d offen%s' % (vr(36 + 2 * mt, 2), VO, 34 + mt, ['', ' sc1', ' nt', ' sc0 sc1'][c.opts.get('osc', 0)]))
    c.ws(3); c.wflush(0, 25, 40)
    a('s_add_u32 s24, s24, 9\ns_cmp_lt_u32 s24, 64\ns_cbranch_scc1 W3_top')
    c.end()
    if pl:
        a.label('W3_last')
        a('s_mov_b32 s28, 0x%x' % (MEMX + 63 * 7168))
        c.gate(lambda: c.probe('W3m', 28, TMP), 0, c.opts.get('g1', 1))
        l = c.spin_head('W3l')
        ldpv()
        a('s_waitcnt vmcnt(0)')
        c.check_poison(list(range(PF(0, 0), PF(0, 0) + 32)) + list(range(VMF(0), VMF(0) + 24)), TMP)
        a('s_cbranch_vccnz %s' % l)
        c.ws(2)
        a('s_branch W3_go')

def gen_workers(c):
    a = c.a
    a.label('W_roles')
    a('s_sub_u32 s25, s21, 1\ns_lshl_b32 s25, s25, 5\ns_add_u32 s22, s22, s25')
    a('v_lshlrev_b32 v%d, 4, v1' % VL)
    a('s_cmp_ge_u32 s22, 160\ns_cbranch_scc1 W3_role')
    a('s_cmp_ge_u32 s22, 128\ns_cbranch_scc1 RH_role')
    a('s_cmp_ge_u32 s22, 64\ns_cbranch_scc1 RT_role')
    gen_RU(c)
    gen_RT(c)
    gen_RH(c)
    gen_W3(c)
```
